```python
import torch

def _softmax(x, axis=-1):
    return torch.softmax(x, dim=axis)
def _gelu(x):
    return torch.nn.functional.gelu(x, approximate="tanh")
def _silu(x):
    return torch.nn.functional.silu(x)
def _sigmoid(x):
    return torch.sigmoid(x)
def _layernorm(x, axis=-1, eps=1e-5):
    m = x.mean(dim=axis, keepdim=True)
    v = x.var(dim=axis, keepdim=True, unbiased=False)
    return (x - m) / torch.sqrt(v + eps)
def _scatter_add(tgt, idx, src, axis=0):
    return tgt.clone().index_add_(axis, idx, src)
def _segment_sum(src, seg, n):
    out = torch.zeros((n,) + src.shape[1:], dtype=src.dtype)
    return out.index_add_(0, seg, src)
def _pad(x, pw):
    flat = tuple(v for pair in reversed(pw) for v in pair)
    return torch.nn.functional.pad(x, flat)

kernel_name = 'concat_heads__gqa_block_cached__mha_block_cached__near_ridge'

def setup_inputs():

    _w = (lambda a: (lambda t: t.to(torch.bfloat16) if t.is_floating_point() else t)(torch.as_tensor(a)))
    def _A_setup():
        B, Sq, D = 8, 128, 448
        Hq, Hkv, Sk, Dh = 16, 8, 512, 256
        assert Hq % Hkv == 0, (Hq, Hkv)
        return {
            "x": _w((lambda *s: torch.randn(*s, dtype=torch.bfloat16) * 0.8)(B, Sq, D)),
            "k_cache": _w((lambda *s: torch.randn(*s, dtype=torch.bfloat16) * 0.8)(B, Hkv, Sk, Dh)),
            "v_cache": _w((lambda *s: torch.randn(*s, dtype=torch.bfloat16) * 0.05)(B, Hkv, Sk, Dh)),
            "wq": _w((lambda *s: torch.randn(*s, dtype=torch.bfloat16) * 0.8)(D, Hq * Dh) * (D ** -0.5)),
            "wo": _w((lambda *s: torch.randn(*s, dtype=torch.bfloat16) * 0.05)(Hq * Dh, D) * ((Hq * Dh) ** -0.5)),
        }
    _A_in = _A_setup()

    def _B_setup():
        B, Sq, D = 8, 128, 448
        H, Sk, Dh = 16, 512, 256
        return {
            "x": _w((lambda *s: torch.randn(*s, dtype=torch.bfloat16) * 0.8)(B, Sq, D)),
            "k_cache": _w((lambda *s: torch.randn(*s, dtype=torch.bfloat16) * 0.8)(B, H, Sk, Dh)),
            "v_cache": _w((lambda *s: torch.randn(*s, dtype=torch.bfloat16) * 0.05)(B, H, Sk, Dh)),
            "wq": _w((lambda *s: torch.randn(*s, dtype=torch.bfloat16) * 0.8)(D, H * Dh) * (D ** -0.5)),
            "wo": _w((lambda *s: torch.randn(*s, dtype=torch.bfloat16) * 0.05)(H * Dh, D) * ((H * Dh) ** -0.5)),
        }
    _B_in = _B_setup()

    return {
        "A_x": _A_in["x"],
        "A_k_cache": _A_in["k_cache"],
        "A_v_cache": _A_in["v_cache"],
        "A_wq": _A_in["wq"],
        "A_wo": _A_in["wo"],
        "B_x": _B_in["x"],
        "B_k_cache": _B_in["k_cache"],
        "B_v_cache": _B_in["v_cache"],
        "B_wq": _B_in["wq"],
        "B_wo": _B_in["wo"],
    }

def reference(A_x, A_k_cache, A_v_cache, A_wq, A_wo, B_x, B_k_cache, B_v_cache, B_wq, B_wo):
    def _A_ref(x, k_cache, v_cache, wq, wo):
        B, Sq, D = x.shape
        Hq, Dh = 16, 256
        Hkv = k_cache.shape[1]
        rep = Hq // Hkv
        q = (lambda x, *d: x.permute(*d))((x @ wq).reshape(B, Sq, Hq, Dh), 0, 2, 1, 3)
        k = (lambda x, n, axis: torch.repeat_interleave(x, n, dim=axis))(k_cache, rep, axis=1)
        v = (lambda x, n, axis: torch.repeat_interleave(x, n, dim=axis))(v_cache, rep, axis=1)
        scores = torch.einsum("bhqd,bhkd->bhqk", q, k) * (Dh ** -0.5)
        p = _softmax(scores, axis=-1)
        o = torch.einsum("bhqk,bhkd->bhqd", p, v)
        return (lambda x, *d: x.permute(*d))(o, 0, 2, 1, 3).reshape(B, Sq, Hq * Dh) @ wo

    def _B_ref(x, k_cache, v_cache, wq, wo):
        B, Sq, D = x.shape
        H, Dh = 16, 256
        q = (lambda x, *d: x.permute(*d))((x @ wq).reshape(B, Sq, H, Dh), 0, 2, 1, 3)
        scores = torch.einsum("bhqd,bhkd->bhqk", q, k_cache) * (Dh ** -0.5)
        p = _softmax(scores, axis=-1)
        o = torch.einsum("bhqk,bhkd->bhqd", p, v_cache)
        return (lambda x, *d: x.permute(*d))(o, 0, 2, 1, 3).reshape(B, Sq, H * Dh) @ wo

    a = _A_ref(A_x, A_k_cache, A_v_cache, A_wq, A_wo)
    b = _B_ref(B_x, B_k_cache, B_v_cache, B_wq, B_wo)
    return torch.concatenate([a, b], axis=-1)
```

```python
import sys, argparse
NAME = "concat_heads__gqa_block_cached__mha_block_cached__near_ridge"

def rng(t, n, c=1): return [(t, n + i) for i in range(c)]
def rt(t, n, c=1): return f"{t}{n}" if c == 1 else f"{t}[{n}:{n+c-1}]"

class I:
    __slots__ = ("text", "kind", "rd", "wr", "rdc", "earliest", "deadline", "pre", "tag", "after")
    def __init__(s, text, kind, rd=(), wr=(), rdc=(), earliest=-1, deadline=1 << 30, pre=(), tag=None, after=()):
        s.text = text; s.kind = kind; s.rd = list(rd); s.wr = list(wr); s.rdc = list(rdc)
        s.earliest = earliest; s.deadline = deadline; s.pre = list(pre); s.tag = tag; s.after = list(after)

def salu(text): return I(text, "salu")
def valu(op, d, *srcs, kind="valu"):
    rd = []; ts = []
    for x in srcs:
        if isinstance(x, int): rd.append(("v", x)); ts.append(f"v{x}")
        elif isinstance(x, tuple): rd.append(("v", x[1])); ts.append(f"{x[0]}v{x[1]}")
        else: ts.append(x)
    return I(f"{op} v{d}, " + ", ".join(ts), kind, rd=rd, wr=[("v", d)])
def trans(op, d, s): return valu(op, d, s, kind="trans")
def accw(a, v): return I(f"v_accvgpr_write_b32 a{a}, v{v}", "valu", rd=[("v", v)], wr=[("a", a)])
def swap32(a, b): return I(f"v_permlane32_swap_b32 v{a}, v{b}", "perm", rd=[("v", a), ("v", b)], wr=[("v", a), ("v", b)])
def swap16(a, b): return I(f"v_permlane16_swap_b32 v{a}, v{b}", "perm", rd=[("v", a), ("v", b)], wr=[("v", a), ("v", b)])
def mfma(d, a, b, c):
    ct = "0" if c is None else rt("v", c, 4)
    return I(f"v_mfma_f32_16x16x32_bf16 {rt('v', d, 4)}, {rt(a[0], a[1], 4)}, {rt(b[0], b[1], 4)}, {ct}", "mfma",
             rd=rng(a[0], a[1], 4) + rng(b[0], b[1], 4), wr=rng("v", d, 4), rdc=[] if c is None else rng("v", c, 4))

O0 = 128
def OT(s, qs, t): return O0 + s * 16 + qs * 8 + t * 4
def SB(par, qs, ks): return 96 + par * 16 + qs * 8 + ks * 4
def PB(par, qs): return 80 + par * 8 + qs * 4
def NM(qs): return 72 + qs * 4
def LA(qs): return 64 + qs * 4
E0 = 56
def VA(r, t): return 32 + r * 8 + t
def KA(r, s): return 20 + r * 4 + s
KVOFF = 16; WQOFF = 12; WOOFF = 8; XOFF = 6; WABASE = 5; STOFF = 4
TMP = 0
def QF(s, qs): return s * 8 + qs * 4
def XF(kt, qs): return 64 + kt * 8 + qs * 4
ONES = 176
RING0 = 192
def YT(cp, nt, qs): return (96 + nt * 8 + qs * 4) if cp == 0 else (O0 + (nt * 2 + qs) * 8 + 4)
S_X, S_K, S_V, S_WQ, S_WO, S_WS = 8, 12, 16, 20, 24, 28
S_WB = 32
S_SOFF = 33; S_SOFF2 = 34; S_SC = 35; S_MASK = 36; S_BIAS = 37
S_RET = 38
S_TWQ = 40; S_T128 = 48; S_TST = 56
S_STAMP = 64
BIAS = 8.0

class Cfg:
    ring = 14; lat = 7; nslots = 10
    kvflag = " nt"; wflag = " nt"; xflag = " nt"; stflag = " nt"; rdflag = " nt"
    early_kv = 6
    dma_space = 3
    stamps = False
    rot = True
    max_ahead = 10
    verbose = False

def f2u(x):
    import struct
    return struct.unpack("<I", struct.pack("<f", x))[0]

def build_main(cfg):
    MF = []; FR = []; VQ = []
    tiles = []
    marks = {}
    def new_tile(name, **kw):
        t = dict(name=name, n=len(tiles), **kw); tiles.append(t); return t
    def frag(tile, reads):
        f = dict(id=len(FR), tile=tile, reads=reads, first=len(MF), last=None, earliest=-1); FR.append(f); return f
    def A(f): return ("a", RING0 + (f["id"] % cfg.ring) * 4)
    def add_m(ins, f=None):
        ins.tag = f; MF.append(ins)
        if f is not None: f["last"] = len(MF) - 1
        return len(MF) - 1
    def tr_tile(tile, bsel, first):
        for T in range(16):
            f = frag(tile, [("tr", "V", T & 7, u * 8192 + (T >> 3) * 256, u) for u in range(2)])
            for qs in range(2):
                d = OT(T >> 1, qs, T & 1)
                i = add_m(mfma(d, A(f), bsel(qs), None if first else d), f)
                marks[(tile["name"], T, qs)] = i
    def qk_tile(j):
        tile = new_tile(f"K{j}", kind="K", idx=j); par = j & 1
        marks[("K", j, "first")] = len(MF)
        for s in range(8):
            for ks in range(2):
                f = frag(tile, [("b128", "K", s & 3, ks * 8192 + (s >> 2) * 256, 0)])
                for qs in range(2):
                    d = SB(par, qs, ks)
                    c = d if s else (None if j < 2 else NM(qs))
                    i = add_m(mfma(d, A(f), ("a", QF(s, qs)), c), f)
                    marks.setdefault(("Quse", s, qs), i)
        marks[("K", j, "last")] = len(MF) - 1
    def pv_tile(j):
        tile = new_tile(f"V{j}", kind="V", idx=j); par = j & 1
        marks[("V", j, "first")] = len(MF)
        for qs in range(2):
            marks[("L", j, qs)] = add_m(mfma(LA(qs), ("a", ONES), ("v", PB(par, qs)), None if j == 0 else LA(qs)))
        tr_tile(tile, lambda qs: ("v", PB(par, qs)), j == 0)
        marks[("V", j, "last")] = len(MF) - 1
    for i in range(14):
        t = new_tile(f"W{i}", kind="W", idx=i)
        tr_tile(t, lambda qs: ("a", XF(i, qs)), i == 0)
    marks["qproj_end"] = len(MF) - 1
    qk_tile(0); qk_tile(1)
    for j in range(16):
        pv_tile(j)
        if j + 2 < 16: qk_tile(j + 2)
    marks["attn_end"] = len(MF) - 1
    for c in range(7):
        marks[("Y", c, "first")] = len(MF)
        for half in range(2):
            tile = new_tile(f"O{c}{'ab'[half]}", kind="O", idx=c, half=half)
            for s4 in range(4):
                s = half * 4 + s4
                for nt in range(4):
                    f = frag(tile, [("tr", "K", nt, s4 * 4096 + u * 2048, u) for u in range(2)])
                    for qs in range(2):
                        d = YT(c & 1, nt, qs)
                        i = add_m(mfma(d, A(f), ("v", OT(s, qs, 0)), None if s == 0 else d), f)
                        marks.setdefault(("Ouse", s, qs), i)
                        marks[("Ydone", c, nt, qs)] = i
    NM_ = len(MF)
    RAW = 4
    def q(ins, earliest, deadline):
        ins.earliest = earliest; ins.deadline = deadline; VQ.append(ins); return ins
    for s in range(8):
        for qs in range(2):
            e = marks[("W13", 2 * s + 1, qs)] + RAW; dl = marks[("Quse", s, qs)] - 1
            b = OT(s, qs, 0)
            for r in range(8): q(valu("v_mul_f32", b + r, f"s{S_SC}", b + r), e, dl)
            for r in range(4): q(valu("v_cvt_pk_bf16_f32", b + r, b + 2 * r, b + 2 * r + 1), e, dl)
        for qs in range(2):
            e = marks[("W13", 2 * s + 1, qs)] + RAW; dl = marks[("Quse", s, qs)] - 1
            b = OT(s, qs, 0)
            q(swap32(b, b + 2), e, dl); q(swap32(b + 1, b + 3), e, dl)
        for qs in range(2):
            e = marks[("W13", 2 * s + 1, qs)] + RAW; dl = marks[("Quse", s, qs)] - 1
            b = OT(s, qs, 0)
            for r in range(4): q(accw(QF(s, qs) + r, b + r), e, dl)
    def rowmax(par, emit):
        for qs in range(2):
            b = SB(par, qs, 0); t = E0 + qs
            emit(valu("v_max3_f32", t, b, b + 1, b + 2));
        for k in (3, 5):
            for qs in range(2):
                b = SB(par, qs, 0); t = E0 + qs
                emit(valu("v_max3_f32", t, t, b + k, b + k + 1))
        for qs in range(2):
            b = SB(par, qs, 0); t = E0 + qs
            emit(valu("v_max_f32", t, t, b + 7))
        for sw in (swap32, swap16):
            for qs in range(2): emit(valu("v_mov_b32", E0 + 2 + qs, E0 + qs))
            for qs in range(2): emit(sw(E0 + qs, E0 + 2 + qs))
            for qs in range(2): emit(valu("v_max_f32", E0 + qs, E0 + qs, E0 + 2 + qs))
    def expcvt(par, emit, ebase=E0, ne=8):
        pend = None; k = 0
        for qs in range(2):
            for i in range(4):
                b = SB(par, qs, 0) + 2 * i
                e0 = ebase + (k % ne); e1 = ebase + ((k + 1) % ne); k += 2
                emit(trans("v_exp_f32", e0, b)); emit(trans("v_exp_f32", e1, b + 1))
                if pend: emit(pend)
                pend = valu("v_cvt_pk_bf16_f32", PB(par, qs) + i, e0, e1)
        emit(pend)
    stubs = []
    for j in range(16):
        par = j & 1
        e = marks[("K", j, "last")] + RAW; dl = marks[("V", j, "first")] - 1
        em = lambda ins: q(ins, e, dl)
        if j == 0:
            rowmax(0, em)
            for qs in range(2):
                for r in range(4): em(valu("v_sub_f32", NM(qs) + r, f"s{S_BIAS}", E0 + qs))
        if j < 2:
            for qs in range(2):
                for r in range(8): em(valu("v_add_f32", SB(par, qs, 0) + r, SB(par, qs, 0) + r, NM(qs)))
        expcvt(par, em)
        if j > 0:
            p = PB(par, 0)
            em(valu("v_or3_b32", TMP, p, p + 1, p + 2)); em(valu("v_or3_b32", TMP + 1, p + 3, p + 4, p + 5))
            em(valu("v_or3_b32", TMP, TMP, p + 6, p + 7))
            x = valu("v_bitop3_b32", TMP, TMP, TMP + 1, f"s{S_MASK}"); x.text += " bitop3:0xa8"; em(x)
            em(I(f"v_cmp_ne_u32 vcc, 0, v{TMP}", "valu", rd=[("v", TMP)]))
            br = I(f"s_cbranch_vccnz L_stub{j}", "br", after=[I(f"L_back{j}:", "label")])
            q(br, max(e, marks[("V", j - 1, "last")]), dl)
            stubs.append((j, par))
        if j == 15:
            for r in range(3):
                for nt in range(4):
                    q(valu("v_xor_b32", KA(r, nt), hex(nt * 32 | r << 16), WABASE), marks[("K", 15, "last")], dl)
            marks["wa_ready"] = dl
    for qs in range(2):
        q(trans("v_rcp_f32", E0 + qs, LA(qs)), marks[("L", 15, qs)] + RAW, marks[("Ouse", 0, 0)] - 1)
    for s in range(8):
        for qs in range(2):
            e = marks[("V15", 2 * s + 1, qs)] + RAW; dl = marks[("Ouse", s, qs)] - 1
            b = OT(s, qs, 0)
            for r in range(8): q(valu("v_mul_f32", b + r, b + r, E0 + qs), e, dl)
            for r in range(4): q(valu("v_cvt_pk_bf16_f32", b + r, b + 2 * r, b + 2 * r + 1), e, dl)
    k = 0
    for c in range(7):
        dl = marks[("Y", c + 2, "first")] - 1 if c + 2 < 7 else NM_ - 1
        pend = None
        for np_ in range(2):
            for qs in range(2):
                e = min(marks[("Ydone", c, 2 * np_ + 1, qs)] + RAW, NM_ - 1)
                st = 72 + (k % 6) * 4; k += 1
                for t in range(2):
                    y = YT(c & 1, 2 * np_ + t, qs)
                    q(valu("v_cvt_pk_bf16_f32", st + 2 * t, y, y + 1), e, dl)
                    q(valu("v_cvt_pk_bf16_f32", st + 2 * t + 1, y + 2, y + 3), e, dl)
                j = np_ * 2 + qs
                q(I(f"buffer_store_dwordx4 {rt('v', st, 4)}, v{STOFF}, s[{S_WS}:{S_WS+3}], s{S_SOFF2} offen{cfg.stflag}", "store",
                    rd=rng("v", st, 4) + [("v", STOFF)], pre=[salu(f"s_add_u32 s{S_SOFF2}, s{S_TST + c}, {j * 16384}")]), e, dl)
    m = 1 << 30
    for ins in reversed(VQ):
        m = min(m, ins.deadline); ins.deadline = m
    for f in FR:
        if f["tile"]["kind"] == "O": f["earliest"] = marks["wa_ready"] + 1
    byname = {t["name"]: t for t in tiles}
    order = [t["name"] for t in tiles]
    if cfg.early_kv:
        kv = [n for n in order if n[0] in "KV"][:cfg.early_kv]
        rest = [n for n in order if n not in kv]
        nw = cfg.nslots - cfg.early_kv
        order = rest[:nw] + kv + rest[nw:]
    if getattr(cfg, "order", None): order = cfg.order
    def dma_ops(t, slot):
        k = t["kind"]; ops = []
        if k == "W":
            i = t["idx"]
            if i % 2 == 0:
                for kk in range(2):
                    for qs in range(2):
                        pass
                for qs in range(2):
                    for kk in range(2):
                        a = XF(i + kk, qs)
                        ops.append(I(f"buffer_load_dwordx4 {rt('a', a, 4)}, v{XOFF + qs}, s[{S_X}:{S_X+3}], s{S_T128 + i // 2} offen offset:{kk * 64}{cfg.xflag}",
                                     "vmem", rd=[("v", XOFF + qs)], wr=rng("a", a, 4), tag=("x", i + kk)))
            pre = [salu(f"s_add_u32 s{S_SOFF}, s{S_TWQ + i // 2}, {(i & 1) * 262144}")]
            srd, vo, fl = S_WQ, WQOFF, cfg.wflag
        elif k in "KV":
            pre = [salu(f"s_mov_b32 s{S_SOFF}, {t['idx'] * 16384}")]
            srd, vo, fl = (S_K if k == "K" else S_V), KVOFF, cfg.kvflag
        else:
            pre = [salu(f"s_add_u32 s{S_SOFF}, s{S_T128 + t['idx']}, {t['half'] * 114688}")]
            srd, vo, fl = S_WO, WOOFF, cfg.wflag
        pre.insert(0, I(f"s_add_u32 m0, s{S_WB}, {slot * 16384}", "salu", tag="m0"))
        for p in range(4):
            ops.append(I(f"buffer_load_dwordx4 v{vo + p}, s[{srd}:{srd+3}], s{S_SOFF} offen offset:{p * 1024}{fl} lds", "dma",
                         rd=[("v", vo + p)], pre=pre if p == 0 else [], tag=("tile", t["n"])))
        return ops

    out = []
    ds_list = []
    ds_cov = [0]
    vm_list = []
    vm_cov = [0]
    free = list(range(cfg.nslots)); MQ = []; oi = [0]; freed_upto = [0]
    bar_done = [-1]
    bar_state = [0]
    last_dma = [-100]
    stats = dict(over=0, dsds=0, waits=0)
    def refill():
        while free and oi[0] < len(order):
            t = byname[order[oi[0]]]
            t["slot"] = free.pop(0); MQ.extend(dma_ops(t, t["slot"])); oi[0] += 1
    def emit(ins):
        out.append(ins)
        if ins.kind in ("vmem", "dma", "store"): vm_list.append(ins.tag)
        for a in ins.after: out.append(a)
    def emit_vm(ins):
        for p in ins.pre: emit(p)
        ins.pre = []; emit(ins)
    DS = [(f, r) for f in FR for r in f["reads"]]
    di = [0]; vi = [0]
    def ds_ins(f, r):
        kind, at, idx, imm, u = r
        slot = f["tile"]["slot"]; reg = (VA if at == "V" else KA)(slot >> 2, idx); off = (slot & 3) * 16384 + imm
        a = A(f)[1]
        if kind == "tr": return I(f"ds_read_b64_tr_b16 {rt('a', a + 2 * u, 2)}, v{reg} offset:{off}", "ds", rd=[("v", reg)], wr=rng("a", a + 2 * u, 2))
        return I(f"ds_read_b128 {rt('a', a, 4)}, v{reg} offset:{off}", "ds", rd=[("v", reg)], wr=rng("a", a, 4))
    def ring_ok(f, g):
        if f["earliest"] > g: return False
        return f["id"] < cfg.ring or FR[f["id"] - cfg.ring]["last"] <= g
    def ds_ready(g):
        if di[0] >= len(DS): return False
        f, r = DS[di[0]]
        return ring_ok(f, g) and f["tile"]["n"] <= bar_done[0]
    def emit_ds(g):
        f, r = DS[di[0]]; emit(ds_ins(f, r)); ds_list.append(g); f["lastrd"] = len(ds_list) - 1; f["tile"]["lastrd"] = len(ds_list) - 1; di[0] += 1
    def vm_wait(t):
        while any(x.tag == ("tile", t["n"]) for x in MQ):
            emit_vm(MQ.pop(0)); stats["over"] += 1
        idx = max(i for i, x in enumerate(vm_list) if x == ("tile", t["n"]))
        if idx < vm_cov[0]: return
        n = min(len(vm_list) - 1 - idx, 63)
        emit(I(f"s_waitcnt vmcnt({n})", "wait")); vm_cov[0] = len(vm_list) - n
    def barrier(t):
        emit(I("s_barrier", "bar")); bar_done[0] = t["n"]
        while freed_upto[0] < len(tiles):
            o = tiles[freed_upto[0]]
            if o["n"] < t["n"] and "lastrd" in o and o["lastrd"] < ds_cov[0] and not any(ff["tile"] is o for ff, _ in DS[di[0]:di[0] + 40]):
                free.append(o["slot"]); freed_upto[0] += 1
            else: break
        refill()
    def next_bar_tile(g, look=0):
        if di[0] >= len(DS): return None
        f, r = DS[min(di[0] + look, len(DS) - 1)]
        if f["tile"]["n"] > bar_done[0] and ring_ok(f, g + 2): return tiles[bar_done[0] + 1]
        return None
    def lgkm_wait(f, g):
        need = f["lastrd"] + 1
        if need <= ds_cov[0]: return False
        cov = need
        while cov < len(ds_list) and ds_list[cov] <= g - cfg.lat: cov += 1
        cov = max(cov, len(ds_list) - 15)
        emit(I(f"s_waitcnt lgkmcnt({len(ds_list) - cov})", "wait")); ds_cov[0] = cov; stats["waits"] += 1
        return True
    def stamp(k):
        if cfg.stamps: emit(I(f"s_memrealtime s[{S_STAMP + 2*k}:{S_STAMP + 2*k + 1}]", "smem"))
    stamp_at = {}
    if cfg.stamps:
        pts = [0, marks["qproj_end"], marks[("V", 0, "first")], marks[("V", 4, "first")], marks[("V", 8, "first")], marks[("V", 12, "first")], marks["attn_end"],
               marks[("Y", 1, "first")], marks[("Y", 4, "first")], NM_ - 1]
        for k, p in enumerate(pts): stamp_at[p] = k + 1
    refill()
    while MQ: emit_vm(MQ.pop(0))
    pro_end = len(out)
    for g in range(-1, NM_):
        if g >= 0: emit(MF[g])
        if g in stamp_at:
            stamp(stamp_at[g]); emit(I("s_waitcnt lgkmcnt(0)", "wait")); ds_cov[0] = len(ds_list)
        nxt = MF[g + 1] if g + 1 < NM_ else None
        nf = nxt.tag if nxt is not None else None
        if nf is not None and nf["first"] == g + 1:
            if "lastrd" not in nf or any(ff is nf for ff, _ in DS[di[0]:di[0] + 2]):
                while any(ff is nf for ff, _ in DS[di[0]:di[0] + 4]) or (g == -1 and ds_ready(g) and len(ds_list) < 12):
                    f, r = DS[di[0]]
                    if f["tile"]["n"] > bar_done[0]:
                        t = tiles[bar_done[0] + 1]
                        if bar_state[0] == 0: vm_wait(t)
                        bar_state[0] = 0; barrier(t)
                    emit_ds(g); stats["over"] += 1
        sc = 0
        if nf is not None and nf["first"] == g + 1:
            if lgkm_wait(nf, g): sc += 1
        if sc == 0:
            t = next_bar_tile(g, 2)
            if t is not None and bar_state[0] == 0 and not any(x.tag == ("tile", t["n"]) for x in MQ):
                vm_wait(t); bar_state[0] = 1; sc += 1
            elif bar_state[0] == 1 and next_bar_tile(g, 0) is not None:
                barrier(tiles[bar_done[0] + 1]); bar_state[0] = 0; sc += 1
        if sc == 0 and MQ and MQ[0].pre:
            emit(MQ[0].pre.pop(0)); sc += 1
        if sc == 0 and vi[0] < len(VQ) and VQ[vi[0]].pre and VQ[vi[0]].earliest <= g:
            emit(VQ[vi[0]].pre.pop(0)); sc += 1
        if sc == 0 and vi[0] < len(VQ) and VQ[vi[0]].kind == "br" and VQ[vi[0]].earliest <= g:
            emit(VQ[vi[0]]); vi[0] += 1; sc += 1
        def slack(k):
            if di[0] + k >= len(DS): return 1 << 20
            return DS[di[0] + k][0]["first"] - 1 - cfg.lat - g
        def vq():
            if vi[0] < len(VQ) and VQ[vi[0]].earliest <= g: return VQ[vi[0]]
            return None
        slots = 2
        v = vq()
        dma_ok = MQ and not MQ[0].pre and g - last_dma[0] >= cfg.dma_space and not (out[-1].tag == "m0")
        urgent = ds_ready(g) and slack(0) <= 0
        if not urgent and dma_ok:
            emit_vm(MQ.pop(0)); last_dma[0] = g; slots = 0
        elif not urgent and v is not None and v.kind in ("trans", "store") and not v.pre:
            emit(v); vi[0] += 1; slots = 0
        else:
            if ds_ready(g): emit_ds(g); slots -= 1
            v = vq()
            plain = v is not None and v.kind in ("valu", "perm")
            if slots == 1 and ds_ready(g) and (slack(0) <= 0 or not plain):
                emit_ds(g); slots -= 1; stats["dsds"] += 1
            while slots > 0:
                v = vq()
                if v is not None and v.kind in ("valu", "perm"):
                    emit(v); vi[0] += 1; slots -= 1
                else: break
        while vi[0] < len(VQ) and VQ[vi[0]].deadline <= g:
            emit_vm(VQ[vi[0]]); vi[0] += 1; stats["over"] += 1
    assert di[0] == len(DS) and vi[0] == len(VQ) and not MQ and oi[0] == len(order)
    if cfg.verbose: print("sched stats", stats, "mfma", NM_, "ins", len(out), file=sys.stderr)

    rare = []
    for j, par in stubs:
        rare.append(I(f"L_stub{j}:", "label")); rare.append(I(f"s_call_b64 s[{S_RET}:{S_RET+1}], L_rescale{par}", "br")); rare.append(I(f"s_branch L_back{j}", "br"))
    for par in range(2):
        R = []
        R.append(I(f"L_rescale{par}:", "label")); R.append(I("s_nop 15", "nop"))
        rowmax(par, R.append)
        for qs in range(2):
            R.append(valu("v_sub_f32", E0 + qs, E0 + qs, f"s{S_BIAS}"))
            R[-1].text = f"v_subrev_f32 v{E0+qs}, s{S_BIAS}, v{E0+qs}"
        for qs in range(2): R.append(valu("v_max_f32", E0 + qs, "0", E0 + qs))
        for qs in range(2):
            x = trans("v_exp_f32", E0 + 2 + qs, ("-", E0 + qs)); R.append(x)
        for qs in range(2):
            for r in range(4): R.append(valu("v_sub_f32", NM(qs) + r, NM(qs) + r, E0 + qs))
            for pp in range(2):
                for r in range(8): R.append(valu("v_sub_f32", SB(pp, qs, 0) + r, SB(pp, qs, 0) + r, E0 + qs))
            for r in range(4): R.append(valu("v_mul_f32", LA(qs) + r, LA(qs) + r, E0 + 2 + qs))
            for s in range(8):
                for r in range(8): R.append(valu("v_mul_f32", OT(s, qs, 0) + r, OT(s, qs, 0) + r, E0 + 2 + qs))
        expcvt(par, R.append, ebase=E0 + 4, ne=4)
        R.append(I("s_nop 3", "nop")); R.append(I(f"s_setpc_b64 s[{S_RET}:{S_RET+1}]", "br"))
        rare += fix_hazards(R)
    return out, pro_end, rare

def fix_hazards(seq, verbose=False):
    res = []; pos = 0
    lw = {}
    lc = {}
    ls = {}
    m0w = -100; nn = 0
    for ins in seq:
        if ins.kind == "label": res.append(ins); continue
        need = 0
        def req(p, n):
            nonlocal need
            need = max(need, n - (pos - p - 1))
        k = ins.kind
        isv = k in ("valu", "trans", "perm")
        for r in ins.rd + ins.rdc:
            if r in lw:
                p, wk = lw[r]
                if k == "mfma":
                    if wk in ("valu", "trans", "perm"): req(p, 2)
                    elif wk == "mfma":
                        if r in ins.rd: req(p, 8)
                        elif not (ins.rdc == ins.wr and lw[r][0] == lw[ins.wr[0]][0]): req(p, 6)
                elif wk == "mfma": req(p, 8)
                elif wk == "trans" and k in ("valu", "perm"): req(p, 1)
                if k == "perm" and wk in ("valu", "trans", "perm"): req(p, 2)
        for r in ins.wr:
            if k != "mfma" and r in lw and lw[r][1] == "mfma": req(lw[r][0], 8)
            if isv and r in lc: req(lc[r], 3)
            if isv and r in ls: req(ls[r], 2)
        if k == "dma": req(m0w, 1)
        if need > 0:
            res.append(I(f"s_nop {need - 1}", "nop")); pos += need; nn += need
        res.append(ins)
        for r in ins.wr: lw[r] = (pos, k)
        if k == "mfma":
            for r in ins.rdc: lc[r] = pos
        if k == "store":
            for r in ins.rd: ls[r] = pos
        if ins.tag == "m0": m0w = pos
        if k == "nop": pos += int(ins.text.split()[1]) + 1
        else: pos += 1
    if verbose: print("hazard nops inserted (states):", nn, file=sys.stderr)
    return res

def srd(P, d, lo, off, n):
    P(f"s_add_u32 s{d}, s{lo}, {off}"); P(f"s_addc_u32 s{d+1}, s{lo+1}, 0")
    P(f"s_mov_b32 s{d+2}, {n}"); P(f"s_mov_b32 s{d+3}, 0x20000")

def kd(P, name, vg, acc):
    P(f".amdhsa_kernel {name}")
    for l in [f"next_free_vgpr {vg}", "next_free_sgpr 102", f"accum_offset {acc}", "group_segment_fixed_size 0", "kernarg_size 104",
              "user_sgpr_count 2", "user_sgpr_kernarg_segment_ptr 1", "system_sgpr_workgroup_id_x 1"]:
        P("  .amdhsa_" + l)
    P(".end_amdhsa_kernel")

PART_BYTES = 16 * 7 * 262144

def gen(cfg):
    L = []; P = L.append
    hdr = open("cdna_kernels/" + NAME + ".s.ref").read().split("\n") if False else []
    P("; @launch kernel=attn_kernel grid=(256,1,1) block=(256,1,1) lds=163840")
    P("; @launch kernel=reduce_kernel grid=(448,1,1) block=(256,1,1) lds=0")
    P('.amdgcn_target "amdgcn-amd-amdhsa--gfx950"')
    P(".text"); P(".globl attn_kernel"); P(".p2align 8"); P(".type attn_kernel,@function"); P("attn_kernel:")
    P("s_cmp_ge_u32 s2, 256"); P("s_cbranch_scc1 L_end")
    if cfg.stamps: P(f"s_memrealtime s[{S_STAMP}:{S_STAMP+1}]")
    P("s_lshr_b32 s3, s2, 7")
    P("s_mul_i32 s4, s3, 40")
    P("s_add_u32 s4, s0, s4"); P("s_addc_u32 s5, s1, 0")
    P("s_load_dwordx8 s[40:47], s[4:5], 0")
    P("s_load_dwordx2 s[48:49], s[4:5], 32")
    P("s_load_dwordx2 s[50:51], s[0:1], 96")
    P("s_and_b32 s52, s2, 7")
    P("s_bfe_u32 s53, s2, 0x30003")
    P("s_bfe_u32 s54, s2, 0x10006")
    P("s_lshl_b32 s55, s52, 1"); P("s_add_u32 s55, s55, s54")
    P("s_lshl_b32 s56, s53, 3"); P("s_add_u32 s56, s56, s52")
    P("s_lshl_b32 s57, s53, 4"); P("s_add_u32 s57, s57, s55")
    P("s_cmp_eq_u32 s3, 0"); P("s_cselect_b32 s56, s56, s57"); P("s_lshl_b32 s56, s56, 18")
    P("s_mul_i32 s57, s53, 114688")
    P("s_lshl_b32 s58, s55, 9")
    P("s_mul_i32 s59, s55, 229376")
    P("s_lshl_b32 s60, s3, 3"); P("s_add_u32 s60, s60, s53"); P(f"s_mul_i32 s60, s60, {7*262144}")
    P("s_lshl_b32 s61, s55, 10"); P("s_add_u32 s60, s60, s61")
    if cfg.rot:
        P("s_lshl_b32 s62, s54, 2"); P("s_add_u32 s62, s62, s53"); P("s_cmp_ge_u32 s62, 7"); P("s_cselect_b32 s63, 7, 0"); P("s_sub_u32 s62, s62, s63")
    else:
        P("s_mov_b32 s62, 0")
    P("v_lshrrev_b32 v1, 6, v0")
    P("v_and_b32 v0, 63, v0")
    P("v_readfirstlane_b32 s6, v1")
    P("v_lshrrev_b32 v2, 5, v0")
    P("v_and_b32 v3, 31, v0")
    P(f"s_lshl_b32 s{S_WB}, s6, 12")
    P("s_and_b32 s7, s6, 1"); P("s_lshl_b32 s7, s7, 4"); P("s_lshr_b32 s63, s6, 1"); P("s_lshl_b32 s63, s63, 2"); P("s_add_u32 s7, s7, s63")
    P("v_add_u32 v56, s7, v2"); P("v_lshlrev_b32 v56, 13, v56")
    P("v_lshlrev_b32 v57, 1, v2"); P("v_xor_b32 v57, v57, v3")
    P("v_lshlrev_b32 v58, 9, v2"); P(f"v_add_u32 v58, s{S_WB}, v58")
    for p in range(4):
        P(f"v_xor_b32 v59, {p * 4}, v57")
        P(f"v_lshl_add_u32 v{KVOFF + p}, v59, 4, v58")
        P(f"v_lshl_add_u32 v{WQOFF + p}, v59, 4, v56")
        kk = [0, 2, 8, 10][p]
        if p: P(f"v_add_u32 v{WQOFF + p}, {kk * 8192 - 1024 * p}, v{WQOFF + p}")
    P("v_and_b32 v60, 15, v0"); P("v_lshrrev_b32 v61, 4, v0")
    P("s_lshl_b32 s7, s6, 5"); P("v_add_u32 v62, s7, v60"); P("v_mul_u32_u24 v62, 896, v62")
    P(f"v_lshl_add_u32 v{XOFF}, v61, 4, v62"); P(f"v_add_u32 v{XOFF + 1}, {16 * 896}, v{XOFF}")
    P("s_waitcnt lgkmcnt(0)")
    srd(P, S_X, 40, "s57", 114688)
    srd(P, S_WQ, 46, "s58", 448 * 8192); P(f"s_sub_u32 s{S_WQ+2}, s{S_WQ+2}, s58")
    srd(P, S_K, 42, "s56", 262144)
    srd(P, S_V, 44, "s56", 262144)
    srd(P, S_WO, 48, "s59", 229376)
    srd(P, S_WS, 50, "s60", PART_BYTES); P(f"s_sub_u32 s{S_WS+2}, s{S_WS+2}, s60")
    if cfg.stamps: P("s_mov_b32 s4, s50"); P("s_mov_b32 s5, s51")
    P("s_mov_b32 s7, s62")
    for u in range(7):
        P(f"s_lshl_b32 s{S_TWQ + u}, s7, 19"); P(f"s_lshl_b32 s{S_T128 + u}, s7, 7"); P(f"s_lshl_b32 s{S_TST + u}, s7, 18")
        if u < 6: P("s_add_u32 s7, s7, 1"); P("s_cmp_eq_u32 s7, 7"); P("s_cselect_b32 s7, 0, s7")
    body, pro_end, rare = build_main(cfg)
    body = body
    late = []
    A = late.append
    A(f"s_mov_b32 s{S_SC}, {hex(f2u(1.4426950408889634 / 16.0))}")
    A(f"s_mov_b32 s{S_MASK}, 0x40004000"); A(f"s_mov_b32 s{S_BIAS}, {hex(f2u(-BIAS))}")
    A("v_lshrrev_b32 v56, 2, v0")
    A("v_and_b32 v57, 3, v0")
    A("v_and_b32 v58, 1, v57"); A("v_lshrrev_b32 v59, 1, v57"); A("v_lshl_or_b32 v57, v58, 1, v59")
    A("v_and_b32 v58, 7, v56"); A("v_lshlrev_b32 v58, 5, v58")
    A("v_lshl_or_b32 v58, v56, 9, v58"); A("v_lshl_or_b32 v58, v57, 3, v58")
    for r in range(3):
        for t in range(8): A(f"v_xor_b32 v{VA(r, t)}, {hex(t * 32 | r << 16)}, v58")
    A("v_bfe_u32 v58, v56, 1, 2"); A("v_lshlrev_b32 v58, 5, v58"); A("v_lshl_or_b32 v58, v56, 7, v58"); A(f"v_lshl_or_b32 v{WABASE}, v57, 3, v58")
    A("v_and_b32 v58, 7, v60"); A("v_lshlrev_b32 v58, 1, v58"); A("v_xor_b32 v58, v58, v61"); A("v_lshlrev_b32 v58, 4, v58"); A("v_lshl_or_b32 v58, v60, 9, v58")
    for r in range(3):
        for s in range(4): A(f"v_xor_b32 v{KA(r, s)}, {hex(s * 64 | r << 16)}, v58")
    A("v_lshrrev_b32 v56, 3, v0"); A("v_and_b32 v57, 3, v56"); A("v_lshrrev_b32 v58, 2, v56"); A("v_lshl_or_b32 v57, v58, 3, v57")
    A("s_lshl_b32 s7, s6, 5"); A("v_add_u32 v57, s7, v57"); A("v_mul_u32_u24 v57, 896, v57")
    A("v_and_b32 v58, 6, v56"); A("v_and_b32 v59, 7, v0"); A("v_xor_b32 v58, v58, v59"); A(f"v_lshl_add_u32 v{WOOFF}, v58, 4, v57")
    for p in range(1, 4):
        A(f"v_add_u32 v{WOOFF + p}, {(16 * (p >> 1) + 4 * (p & 1)) * 896 - 1024 * p}, v{WOOFF}")
    A("s_lshl_b32 s7, s6, 16"); A(f"v_lshlrev_b32 v{STOFF}, 4, v0"); A(f"v_add_u32 v{STOFF}, s7, v{STOFF}")
    A("v_mov_b32 v56, 0x3f803f80")
    for r in range(4): A(f"v_accvgpr_write_b32 a{ONES + r}, v56")
    seq = body[:pro_end] + [I(t, "salu") for t in late] + body[pro_end:]
    seq = fix_hazards(seq, cfg.verbose)
    for ins in seq: P(ins.text)
    if cfg.stamps:
        P("s_waitcnt vmcnt(0)"); P(f"s_memrealtime s[{S_STAMP + 22}:{S_STAMP + 23}]"); P("s_waitcnt lgkmcnt(0)")
        P(f"s_add_u32 s8, s4, {64 << 20}"); P("s_addc_u32 s9, s5, 0"); P("s_mov_b32 s10, 0x100000"); P("s_mov_b32 s11, 0x20000")
        P("s_lshl_b32 s7, s2, 2"); P("s_add_u32 s7, s7, s6"); P("s_lshl_b32 s7, s7, 6"); P("v_mov_b32 v1, s7")
        P("s_mov_b64 exec, 1")
        for k in range(12):
            P(f"v_mov_b32 v2, s{S_STAMP + 2*k}"); P(f"buffer_store_dword v2, v1, s[8:11], 0 offen offset:{4*k}"); P("s_nop 1")
    P("L_end:"); P("s_endpgm")
    for ins in rare: P(ins.text)
    P(".p2align 8"); P(".globl reduce_kernel"); P(".type reduce_kernel,@function"); P("reduce_kernel:")
    P("s_cmp_ge_u32 s2, 448"); P("s_cbranch_scc1 R_end")
    P("s_load_dwordx2 s[4:5], s[0:1], 96"); P("s_load_dwordx2 s[6:7], s[0:1], 80")
    P("v_lshrrev_b32 v1, 6, v0"); P("v_and_b32 v0, 63, v0"); P("v_readfirstlane_b32 s16, v1")
    P("v_lshlrev_b32 v2, 4, v0")
    P("s_lshl_b32 s17, s2, 2"); P("s_add_u32 s17, s17, s16"); P("s_lshl_b32 s17, s17, 14")
    P("s_lshr_b32 s18, s2, 2")
    P("s_mul_i32 s19, s18, 9363"); P("s_lshr_b32 s19, s19, 16")
    P("s_mul_i32 s20, s19, 7"); P("s_sub_u32 s20, s18, s20")
    P("s_and_b32 s21, s2, 3")
    P("s_waitcnt lgkmcnt(0)")
    srd(P, 8, 4, "s17", 16384)
    srd(P, 12, 6, 0, 8 * 128 * 896 * 2)
    for h in range(16):
        if h % 4 == 0: P(f"s_mov_b32 s22, {h * 1024}")
        P(f"buffer_load_dwordx4 v[{16 + h*4}:{16 + h*4 + 3}], v2, s[8:11], s22 offen offset:{(h % 4) * 1024}{cfg.rdflag}")
    P("s_and_b32 s23, s19, 7"); P("s_lshl_b32 s23, s23, 7"); P("s_lshl_b32 s24, s21, 5"); P("s_add_u32 s23, s23, s24")
    P("s_and_b32 s24, s16, 1"); P("s_lshl_b32 s24, s24, 4"); P("s_add_u32 s23, s23, s24")
    P("s_lshr_b32 s24, s19, 3"); P("s_mul_i32 s24, s24, 896"); P("s_lshl_b32 s25, s20, 7"); P("s_add_u32 s24, s24, s25")
    P("s_lshr_b32 s25, s16, 1"); P("s_lshl_b32 s25, s25, 6"); P("s_add_u32 s24, s24, s25")
    P("v_and_b32 v3, 15, v0"); P("v_add_u32 v3, s23, v3"); P("v_mul_u32_u24 v3, 1792, v3")
    P("v_lshrrev_b32 v4, 4, v0"); P("v_lshl_add_u32 v3, v4, 4, v3")
    for h in range(16):
        P(f"s_waitcnt vmcnt({15 - h})")
        for r in range(4):
            v = 16 + h * 4 + r
            if h == 0:
                P(f"v_lshlrev_b32 v{8 + 2*r}, 16, v{v}"); P(f"v_and_b32 v{9 + 2*r}, 0xffff0000, v{v}")
            else:
                P(f"v_lshlrev_b32 v5, 16, v{v}"); P(f"v_and_b32 v{v}, 0xffff0000, v{v}")
                P(f"v_add_f32 v{8 + 2*r}, v{8 + 2*r}, v5"); P(f"v_add_f32 v{9 + 2*r}, v{9 + 2*r}, v{v}")
    for r in range(4): P(f"v_cvt_pk_bf16_f32 v{4 + r}, v{8 + 2*r}, v{9 + 2*r}")
    P("s_nop 1"); P("v_permlane32_swap_b32 v4, v6"); P("v_permlane32_swap_b32 v5, v7")
    P("buffer_store_dwordx4 v[4:7], v3, s[12:15], s24 offen")
    P("R_end:"); P("s_endpgm")
    P('.section .rodata,"a"'); P(".p2align 6")
    kd(P, "attn_kernel", 512, 256)
    P(".p2align 6")
    kd(P, "reduce_kernel", 80, 80)
    return "\n".join(L) + "\n"

if __name__ == "__main__":
    cfg = Cfg(); cfg.verbose = True
    outp = sys.argv[1]
    for kv in sys.argv[2:]:
        k, v = kv.split("=", 1)
        setattr(cfg, k, eval(v))
    open(outp, "w").write(gen(cfg))
```

```python
import sys, argparse
NAME = "concat_heads__gqa_block_cached__mha_block_cached__near_ridge"

def rng(t, n, c=1): return [(t, n + i) for i in range(c)]
def rt(t, n, c=1): return f"{t}{n}" if c == 1 else f"{t}[{n}:{n+c-1}]"

class I:
    __slots__ = ("text", "kind", "rd", "wr", "rdc", "earliest", "deadline", "pre", "tag", "after")
    def __init__(s, text, kind, rd=(), wr=(), rdc=(), earliest=-1, deadline=1 << 30, pre=(), tag=None, after=()):
        s.text = text; s.kind = kind; s.rd = list(rd); s.wr = list(wr); s.rdc = list(rdc)
        s.earliest = earliest; s.deadline = deadline; s.pre = list(pre); s.tag = tag; s.after = list(after)

def salu(text): return I(text, "salu")
def valu(op, d, *srcs, kind="valu"):
    rd = []; ts = []
    for x in srcs:
        if isinstance(x, int): rd.append(("v", x)); ts.append(f"v{x}")
        elif isinstance(x, tuple): rd.append(("v", x[1])); ts.append(f"{x[0]}v{x[1]}")
        else: ts.append(x)
    return I(f"{op} v{d}, " + ", ".join(ts), kind, rd=rd, wr=[("v", d)])
def trans(op, d, s): return valu(op, d, s, kind="trans")
def accw(a, v): return I(f"v_accvgpr_write_b32 a{a}, v{v}", "valu", rd=[("v", v)], wr=[("a", a)])
def swap32(a, b): return I(f"v_permlane32_swap_b32 v{a}, v{b}", "perm", rd=[("v", a), ("v", b)], wr=[("v", a), ("v", b)])
def swap16(a, b): return I(f"v_permlane16_swap_b32 v{a}, v{b}", "perm", rd=[("v", a), ("v", b)], wr=[("v", a), ("v", b)])
def mfma(d, a, b, c):
    ct = "0" if c is None else rt("v", c, 4)
    return I(f"v_mfma_f32_16x16x32_bf16 {rt('v', d, 4)}, {rt(a[0], a[1], 4)}, {rt(b[0], b[1], 4)}, {ct}", "mfma",
             rd=rng(a[0], a[1], 4) + rng(b[0], b[1], 4), wr=rng("v", d, 4), rdc=[] if c is None else rng("v", c, 4))

O0 = 128
def OT(s, qs, t): return O0 + s * 16 + qs * 8 + t * 4
def SB(par, qs, ks): return 96 + par * 16 + qs * 8 + ks * 4
def PB(par, qs): return 80 + par * 8 + qs * 4
def NM(qs): return 72 + qs * 4
def LA(qs): return 64 + qs * 4
E0 = 56
def VA(r, t): return 32 + r * 8 + t
def KA(r, s): return 20 + r * 4 + s
KVOFF = 16; WQOFF = 12; WOOFF = 8; XOFF = 6; WABASE = 5; STOFF = 4
TMP = 0
def QF(s, qs): return s * 8 + qs * 4
def XF(kt, qs): return 64 + kt * 8 + qs * 4
ONES = 176
RING0 = 192
def YT(cp, nt, qs): return (96 + nt * 8 + qs * 4) if cp == 0 else (O0 + (nt * 2 + qs) * 8 + 4)
S_X, S_K, S_V, S_WQ, S_WO, S_WS = 8, 12, 16, 20, 24, 28
S_WB = 32
S_SOFF = 33; S_SOFF2 = 34; S_SC = 35; S_MASK = 36; S_BIAS = 37
S_RET = 38
S_TWQ = 40; S_T128 = 48; S_TST = 56
S_STAMP = 64
BIAS = 8.0

class Cfg:
    ring = 14; lat = 7; nslots = 10
    kvflag = " nt"; wflag = " nt"; xflag = " nt"; stflag = " nt"; rdflag = " nt"
    early_kv = 6
    dma_space = 3
    stamps = False
    rot = True
    max_ahead = 10
    verbose = False
    npro = 12
    kv_every = 1

def f2u(x):
    import struct
    return struct.unpack("<I", struct.pack("<f", x))[0]

def build_main(cfg):
    MF = []; FR = []; VQ = []
    tiles = []
    marks = {}
    def new_tile(name, **kw):
        t = dict(name=name, n=len(tiles), **kw); tiles.append(t); return t
    def frag(tile, reads):
        f = dict(id=len(FR), tile=tile, reads=reads, first=len(MF), last=None, earliest=-1); FR.append(f); return f
    def A(f): return ("a", RING0 + (f["id"] % cfg.ring) * 4)
    def add_m(ins, f=None):
        ins.tag = f; MF.append(ins)
        if f is not None: f["last"] = len(MF) - 1
        return len(MF) - 1
    def tr_tile(tile, bsel, first):
        for T in range(16):
            f = frag(tile, [("tr", "V", T & 7, u * 8192 + (T >> 3) * 256, u) for u in range(2)])
            for qs in range(2):
                d = OT(T >> 1, qs, T & 1)
                i = add_m(mfma(d, A(f), bsel(qs), None if first else d), f)
                marks[(tile["name"], T, qs)] = i
    def qk_tile(j):
        tile = new_tile(f"K{j}", kind="K", idx=j); par = j & 1
        marks[("K", j, "first")] = len(MF)
        for s in range(8):
            for ks in range(2):
                f = frag(tile, [("b128", "K", s & 3, ks * 8192 + (s >> 2) * 256, 0)])
                for qs in range(2):
                    d = SB(par, qs, ks)
                    c = d if s else (None if j < 2 else NM(qs))
                    i = add_m(mfma(d, A(f), ("a", QF(s, qs)), c), f)
                    marks.setdefault(("Quse", s, qs), i)
        marks[("K", j, "last")] = len(MF) - 1
    def pv_tile(j):
        tile = new_tile(f"V{j}", kind="V", idx=j); par = j & 1
        marks[("V", j, "first")] = len(MF)
        for qs in range(2):
            marks[("L", j, qs)] = add_m(mfma(LA(qs), ("a", ONES), ("v", PB(par, qs)), None if j == 0 else LA(qs)))
        tr_tile(tile, lambda qs: ("v", PB(par, qs)), j == 0)
        marks[("V", j, "last")] = len(MF) - 1
    for i in range(14):
        t = new_tile(f"W{i}", kind="W", idx=i)
        tr_tile(t, lambda qs: ("a", XF(i, qs)), i == 0)
    marks["qproj_end"] = len(MF) - 1
    qk_tile(0); qk_tile(1)
    for j in range(16):
        pv_tile(j)
        if j + 2 < 16: qk_tile(j + 2)
    marks["attn_end"] = len(MF) - 1
    for c in range(7):
        marks[("Y", c, "first")] = len(MF)
        for half in range(2):
            tile = new_tile(f"O{c}{'ab'[half]}", kind="O", idx=c, half=half)
            for s4 in range(4):
                s = half * 4 + s4
                for nt in range(4):
                    f = frag(tile, [("tr", "K", nt, s4 * 4096 + u * 2048, u) for u in range(2)])
                    for qs in range(2):
                        d = YT(c & 1, nt, qs)
                        i = add_m(mfma(d, A(f), ("v", OT(s, qs, 0)), None if s == 0 else d), f)
                        marks.setdefault(("Ouse", s, qs), i)
                        marks[("Ydone", c, nt, qs)] = i
    NM_ = len(MF)
    RAW = 4
    def q(ins, earliest, deadline):
        ins.earliest = earliest; ins.deadline = deadline; VQ.append(ins); return ins
    for s in range(8):
        for qs in range(2):
            e = marks[("W13", 2 * s + 1, qs)] + RAW; dl = marks[("Quse", s, qs)] - 1
            b = OT(s, qs, 0)
            for r in range(8): q(valu("v_mul_f32", b + r, f"s{S_SC}", b + r), e, dl)
            for r in range(4): q(valu("v_cvt_pk_bf16_f32", b + r, b + 2 * r, b + 2 * r + 1), e, dl)
        for qs in range(2):
            e = marks[("W13", 2 * s + 1, qs)] + RAW; dl = marks[("Quse", s, qs)] - 1
            b = OT(s, qs, 0)
            q(swap32(b, b + 2), e, dl); q(swap32(b + 1, b + 3), e, dl)
        for qs in range(2):
            e = marks[("W13", 2 * s + 1, qs)] + RAW; dl = marks[("Quse", s, qs)] - 1
            b = OT(s, qs, 0)
            for r in range(4): q(accw(QF(s, qs) + r, b + r), e, dl)
    def rowmax(par, emit):
        for qs in range(2):
            b = SB(par, qs, 0); t = E0 + qs
            emit(valu("v_max3_f32", t, b, b + 1, b + 2));
        for k in (3, 5):
            for qs in range(2):
                b = SB(par, qs, 0); t = E0 + qs
                emit(valu("v_max3_f32", t, t, b + k, b + k + 1))
        for qs in range(2):
            b = SB(par, qs, 0); t = E0 + qs
            emit(valu("v_max_f32", t, t, b + 7))
        for sw in (swap32, swap16):
            for qs in range(2): emit(valu("v_mov_b32", E0 + 2 + qs, E0 + qs))
            for qs in range(2): emit(sw(E0 + qs, E0 + 2 + qs))
            for qs in range(2): emit(valu("v_max_f32", E0 + qs, E0 + qs, E0 + 2 + qs))
    def expcvt(par, emit, ebase=E0, ne=8):
        pend = None; k = 0
        for qs in range(2):
            for i in range(4):
                b = SB(par, qs, 0) + 2 * i
                e0 = ebase + (k % ne); e1 = ebase + ((k + 1) % ne); k += 2
                emit(trans("v_exp_f32", e0, b)); emit(trans("v_exp_f32", e1, b + 1))
                if pend: emit(pend)
                pend = valu("v_cvt_pk_bf16_f32", PB(par, qs) + i, e0, e1)
        emit(pend)
    stubs = []
    for j in range(16):
        par = j & 1
        e = marks[("K", j, "last")] + RAW; dl = marks[("V", j, "first")] - 1
        em = lambda ins: q(ins, e, dl)
        if j == 0:
            rowmax(0, em)
            for qs in range(2):
                for r in range(4): em(valu("v_sub_f32", NM(qs) + r, f"s{S_BIAS}", E0 + qs))
        if j < 2:
            for qs in range(2):
                for r in range(8): em(valu("v_add_f32", SB(par, qs, 0) + r, SB(par, qs, 0) + r, NM(qs)))
        expcvt(par, em)
        if j > 0:
            p = PB(par, 0)
            em(valu("v_or3_b32", TMP, p, p + 1, p + 2)); em(valu("v_or3_b32", TMP + 1, p + 3, p + 4, p + 5))
            em(valu("v_or3_b32", TMP, TMP, p + 6, p + 7))
            x = valu("v_bitop3_b32", TMP, TMP, TMP + 1, f"s{S_MASK}"); x.text += " bitop3:0xa8"; em(x)
            em(I(f"v_cmp_ne_u32 vcc, 0, v{TMP}", "valu", rd=[("v", TMP)]))
            br = I(f"s_cbranch_vccnz L_stub{j}", "br", after=[I(f"L_back{j}:", "label")])
            q(br, max(e, marks[("V", j - 1, "last")]), dl)
            stubs.append((j, par))
        if j == 15:
            for r in range(3):
                for nt in range(4):
                    q(valu("v_xor_b32", KA(r, nt), hex(nt * 32 | r << 16), WABASE), marks[("K", 15, "last")], dl)
            marks["wa_ready"] = dl
    for qs in range(2):
        q(trans("v_rcp_f32", E0 + qs, LA(qs)), marks[("L", 15, qs)] + RAW, marks[("Ouse", 0, 0)] - 1)
    for s in range(8):
        for qs in range(2):
            e = marks[("V15", 2 * s + 1, qs)] + RAW; dl = marks[("Ouse", s, qs)] - 1
            b = OT(s, qs, 0)
            for r in range(8): q(valu("v_mul_f32", b + r, b + r, E0 + qs), e, dl)
            for r in range(4): q(valu("v_cvt_pk_bf16_f32", b + r, b + 2 * r, b + 2 * r + 1), e, dl)
    k = 0
    for c in range(7):
        dl = marks[("Y", c + 2, "first")] - 1 if c + 2 < 7 else NM_ - 1
        pend = None
        for np_ in range(2):
            for qs in range(2):
                e = min(marks[("Ydone", c, 2 * np_ + 1, qs)] + RAW, NM_ - 1)
                st = 72 + (k % 6) * 4; k += 1
                for t in range(2):
                    y = YT(c & 1, 2 * np_ + t, qs)
                    q(valu("v_cvt_pk_bf16_f32", st + 2 * t, y, y + 1), e, dl)
                    q(valu("v_cvt_pk_bf16_f32", st + 2 * t + 1, y + 2, y + 3), e, dl)
                j = np_ * 2 + qs
                q(I(f"buffer_store_dwordx4 {rt('v', st, 4)}, v{STOFF}, s[{S_WS}:{S_WS+3}], s{S_SOFF2} offen{cfg.stflag}", "store",
                    rd=rng("v", st, 4) + [("v", STOFF)], pre=[salu(f"s_add_u32 s{S_SOFF2}, s{S_TST + c}, {j * 16384}")]), e, dl)
    m = 1 << 30
    for ins in reversed(VQ):
        m = min(m, ins.deadline); ins.deadline = m
    for f in FR:
        if f["tile"]["kind"] == "O": f["earliest"] = marks["wa_ready"] + 1
    byname = {t["name"]: t for t in tiles}
    order = [t["name"] for t in tiles]
    if cfg.early_kv:
        kv = [n for n in order if n[0] in "KV"][:cfg.early_kv]
        rest = [n for n in order if n not in kv]
        nw = cfg.nslots - cfg.early_kv
        order = rest[:nw]; rest = rest[nw:]
        while kv:
            order.append(kv.pop(0))
            for _ in range(cfg.kv_every):
                order.append(rest.pop(0))
        order += rest
    if getattr(cfg, "order", None): order = cfg.order
    def dma_ops(t, slot):
        k = t["kind"]; ops = []
        if k == "W":
            i = t["idx"]
            if i % 2 == 0:
                for kk in range(2):
                    for qs in range(2):
                        pass
                for qs in range(2):
                    for kk in range(2):
                        a = XF(i + kk, qs)
                        ops.append(I(f"buffer_load_dwordx4 {rt('a', a, 4)}, v{XOFF + qs}, s[{S_X}:{S_X+3}], s{S_T128 + i // 2} offen offset:{kk * 64}{cfg.xflag}",
                                     "vmem", rd=[("v", XOFF + qs)], wr=rng("a", a, 4), tag=("x", i + kk)))
            pre = [salu(f"s_add_u32 s{S_SOFF}, s{S_TWQ + i // 2}, {(i & 1) * 262144}")]
            srd, vo, fl = S_WQ, WQOFF, cfg.wflag
        elif k in "KV":
            pre = [salu(f"s_mov_b32 s{S_SOFF}, {t['idx'] * 16384}")]
            srd, vo, fl = (S_K if k == "K" else S_V), KVOFF, cfg.kvflag
        else:
            pre = [salu(f"s_add_u32 s{S_SOFF}, s{S_T128 + t['idx']}, {t['half'] * 114688}")]
            srd, vo, fl = S_WO, WOOFF, cfg.wflag
        pre.insert(0, I(f"s_add_u32 m0, s{S_WB}, {slot * 16384}", "salu", tag="m0"))
        for p in range(4):
            ops.append(I(f"buffer_load_dwordx4 v{vo + p}, s[{srd}:{srd+3}], s{S_SOFF} offen offset:{p * 1024}{fl} lds", "dma",
                         rd=[("v", vo + p)], pre=pre if p == 0 else [], tag=("tile", t["n"])))
        return ops

    out = []
    ds_list = []
    ds_cov = [0]
    vm_list = []
    vm_cov = [0]
    free = list(range(cfg.nslots)); MQ = []; oi = [0]; freed_upto = [0]
    bar_done = [-1]
    bar_state = [0]
    last_dma = [-100]
    stats = dict(over=0, dsds=0, waits=0)
    def refill():
        while free and oi[0] < len(order):
            t = byname[order[oi[0]]]
            t["slot"] = free.pop(0); MQ.extend(dma_ops(t, t["slot"])); oi[0] += 1
    def emit(ins):
        out.append(ins)
        if ins.kind in ("vmem", "dma", "store"): vm_list.append(ins.tag)
        for a in ins.after: out.append(a)
    def emit_vm(ins):
        for p in ins.pre: emit(p)
        ins.pre = []; emit(ins)
    DS = [(f, r) for f in FR for r in f["reads"]]
    di = [0]; vi = [0]
    def ds_ins(f, r):
        kind, at, idx, imm, u = r
        slot = f["tile"]["slot"]; reg = (VA if at == "V" else KA)(slot >> 2, idx); off = (slot & 3) * 16384 + imm
        a = A(f)[1]
        if kind == "tr": return I(f"ds_read_b64_tr_b16 {rt('a', a + 2 * u, 2)}, v{reg} offset:{off}", "ds", rd=[("v", reg)], wr=rng("a", a + 2 * u, 2))
        return I(f"ds_read_b128 {rt('a', a, 4)}, v{reg} offset:{off}", "ds", rd=[("v", reg)], wr=rng("a", a, 4))
    def ring_ok(f, g):
        if f["earliest"] > g: return False
        return f["id"] < cfg.ring or FR[f["id"] - cfg.ring]["last"] <= g
    def ds_ready(g):
        if di[0] >= len(DS): return False
        f, r = DS[di[0]]
        return ring_ok(f, g) and f["tile"]["n"] <= bar_done[0]
    def emit_ds(g):
        f, r = DS[di[0]]; emit(ds_ins(f, r)); ds_list.append(g); f["lastrd"] = len(ds_list) - 1; f["tile"]["lastrd"] = len(ds_list) - 1; di[0] += 1
    def vm_wait(t):
        while any(x.tag == ("tile", t["n"]) for x in MQ):
            emit_vm(MQ.pop(0)); stats["over"] += 1
        idx = max(i for i, x in enumerate(vm_list) if x == ("tile", t["n"]))
        if idx < vm_cov[0]: return
        n = min(len(vm_list) - 1 - idx, 63)
        emit(I(f"s_waitcnt vmcnt({n})", "wait")); vm_cov[0] = len(vm_list) - n
    def barrier(t):
        emit(I("s_barrier", "bar")); bar_done[0] = t["n"]
        while freed_upto[0] < len(tiles):
            o = tiles[freed_upto[0]]
            if o["n"] < t["n"] and "lastrd" in o and o["lastrd"] < ds_cov[0] and not any(ff["tile"] is o for ff, _ in DS[di[0]:di[0] + 40]):
                free.append(o["slot"]); freed_upto[0] += 1
            else: break
        refill()
    def next_bar_tile(g, look=0):
        if di[0] >= len(DS): return None
        f, r = DS[min(di[0] + look, len(DS) - 1)]
        if f["tile"]["n"] > bar_done[0] and ring_ok(f, g + 2): return tiles[bar_done[0] + 1]
        return None
    def lgkm_wait(f, g):
        need = f["lastrd"] + 1
        if need <= ds_cov[0]: return False
        cov = need
        while cov < len(ds_list) and ds_list[cov] <= g - cfg.lat: cov += 1
        cov = max(cov, len(ds_list) - 15)
        emit(I(f"s_waitcnt lgkmcnt({len(ds_list) - cov})", "wait")); ds_cov[0] = cov; stats["waits"] += 1
        return True
    def stamp(k):
        if cfg.stamps: emit(I(f"s_memrealtime s[{S_STAMP + 2*k}:{S_STAMP + 2*k + 1}]", "smem"))
    stamp_at = {}
    if cfg.stamps:
        pts = [0, marks["qproj_end"], marks[("V", 0, "first")], marks[("V", 4, "first")], marks[("V", 8, "first")], marks[("V", 12, "first")], marks["attn_end"],
               marks[("Y", 1, "first")], marks[("Y", 4, "first")], NM_ - 1]
        for k, p in enumerate(pts): stamp_at[p] = k + 1
    refill()
    for _ in range(cfg.npro): emit_vm(MQ.pop(0))
    pro_end = len(out)
    for g in range(-1, NM_):
        if g >= 0: emit(MF[g])
        if g in stamp_at:
            stamp(stamp_at[g]); emit(I("s_waitcnt lgkmcnt(0)", "wait")); ds_cov[0] = len(ds_list)
        nxt = MF[g + 1] if g + 1 < NM_ else None
        nf = nxt.tag if nxt is not None else None
        if nf is not None and nf["first"] == g + 1:
            if "lastrd" not in nf or any(ff is nf for ff, _ in DS[di[0]:di[0] + 2]):
                while any(ff is nf for ff, _ in DS[di[0]:di[0] + 4]) or (g == -1 and ds_ready(g) and len(ds_list) < 12):
                    f, r = DS[di[0]]
                    if f["tile"]["n"] > bar_done[0]:
                        t = tiles[bar_done[0] + 1]
                        if bar_state[0] == 0: vm_wait(t)
                        bar_state[0] = 0; barrier(t)
                    emit_ds(g); stats["over"] += 1
        sc = 0
        if nf is not None and nf["first"] == g + 1:
            if lgkm_wait(nf, g): sc += 1
        if sc == 0:
            t = next_bar_tile(g, 2)
            if t is not None and bar_state[0] == 0 and not any(x.tag == ("tile", t["n"]) for x in MQ):
                vm_wait(t); bar_state[0] = 1; sc += 1
            elif bar_state[0] == 1 and next_bar_tile(g, 0) is not None:
                barrier(tiles[bar_done[0] + 1]); bar_state[0] = 0; sc += 1
        if sc == 0 and MQ and MQ[0].pre:
            emit(MQ[0].pre.pop(0)); sc += 1
        if sc == 0 and vi[0] < len(VQ) and VQ[vi[0]].pre and VQ[vi[0]].earliest <= g:
            emit(VQ[vi[0]].pre.pop(0)); sc += 1
        if sc == 0 and vi[0] < len(VQ) and VQ[vi[0]].kind == "br" and VQ[vi[0]].earliest <= g:
            emit(VQ[vi[0]]); vi[0] += 1; sc += 1
        def slack(k):
            if di[0] + k >= len(DS): return 1 << 20
            return DS[di[0] + k][0]["first"] - 1 - cfg.lat - g
        def vq():
            if vi[0] < len(VQ) and VQ[vi[0]].earliest <= g: return VQ[vi[0]]
            return None
        slots = 2
        v = vq()
        dma_ok = MQ and not MQ[0].pre and g - last_dma[0] >= cfg.dma_space and not (out[-1].tag == "m0")
        urgent = ds_ready(g) and slack(0) <= 0
        if not urgent and dma_ok:
            emit_vm(MQ.pop(0)); last_dma[0] = g; slots = 0
        elif not urgent and v is not None and v.kind in ("trans", "store") and not v.pre:
            emit(v); vi[0] += 1; slots = 0
        else:
            if ds_ready(g): emit_ds(g); slots -= 1
            v = vq()
            plain = v is not None and v.kind in ("valu", "perm")
            if slots == 1 and ds_ready(g) and (slack(0) <= 0 or not plain):
                emit_ds(g); slots -= 1; stats["dsds"] += 1
            while slots > 0:
                v = vq()
                if v is not None and v.kind in ("valu", "perm"):
                    emit(v); vi[0] += 1; slots -= 1
                else: break
        while vi[0] < len(VQ) and VQ[vi[0]].deadline <= g:
            emit_vm(VQ[vi[0]]); vi[0] += 1; stats["over"] += 1
    assert di[0] == len(DS) and vi[0] == len(VQ) and not MQ and oi[0] == len(order)
    if cfg.verbose: print("sched stats", stats, "mfma", NM_, "ins", len(out), file=sys.stderr)

    rare = []
    for j, par in stubs:
        rare.append(I(f"L_stub{j}:", "label")); rare.append(I(f"s_call_b64 s[{S_RET}:{S_RET+1}], L_rescale{par}", "br")); rare.append(I(f"s_branch L_back{j}", "br"))
    for par in range(2):
        R = []
        R.append(I(f"L_rescale{par}:", "label")); R.append(I("s_nop 15", "nop"))
        rowmax(par, R.append)
        for qs in range(2):
            R.append(valu("v_sub_f32", E0 + qs, E0 + qs, f"s{S_BIAS}"))
            R[-1].text = f"v_subrev_f32 v{E0+qs}, s{S_BIAS}, v{E0+qs}"
        for qs in range(2): R.append(valu("v_max_f32", E0 + qs, "0", E0 + qs))
        for qs in range(2):
            x = trans("v_exp_f32", E0 + 2 + qs, ("-", E0 + qs)); R.append(x)
        for qs in range(2):
            for r in range(4): R.append(valu("v_sub_f32", NM(qs) + r, NM(qs) + r, E0 + qs))
            for pp in range(2):
                for r in range(8): R.append(valu("v_sub_f32", SB(pp, qs, 0) + r, SB(pp, qs, 0) + r, E0 + qs))
            for r in range(4): R.append(valu("v_mul_f32", LA(qs) + r, LA(qs) + r, E0 + 2 + qs))
            for s in range(8):
                for r in range(8): R.append(valu("v_mul_f32", OT(s, qs, 0) + r, OT(s, qs, 0) + r, E0 + 2 + qs))
        expcvt(par, R.append, ebase=E0 + 4, ne=4)
        R.append(I("s_nop 3", "nop")); R.append(I(f"s_setpc_b64 s[{S_RET}:{S_RET+1}]", "br"))
        rare += fix_hazards(R)
    return out, pro_end, rare

def fix_hazards(seq, verbose=False):
    res = []; pos = 0
    lw = {}
    lc = {}
    ls = {}
    m0w = -100; nn = 0
    for ins in seq:
        if ins.kind == "label": res.append(ins); continue
        need = 0
        def req(p, n):
            nonlocal need
            need = max(need, n - (pos - p - 1))
        k = ins.kind
        isv = k in ("valu", "trans", "perm")
        for r in ins.rd + ins.rdc:
            if r in lw:
                p, wk = lw[r]
                if k == "mfma":
                    if wk in ("valu", "trans", "perm"): req(p, 2)
                    elif wk == "mfma":
                        if r in ins.rd: req(p, 8)
                        elif not (ins.rdc == ins.wr and lw[r][0] == lw[ins.wr[0]][0]): req(p, 6)
                elif wk == "mfma": req(p, 8)
                elif wk == "trans" and k in ("valu", "perm"): req(p, 1)
                if k == "perm" and wk in ("valu", "trans", "perm"): req(p, 2)
        for r in ins.wr:
            if k != "mfma" and r in lw and lw[r][1] == "mfma": req(lw[r][0], 8)
            if isv and r in lc: req(lc[r], 3)
            if isv and r in ls: req(ls[r], 2)
        if k == "dma": req(m0w, 1)
        if need > 0:
            res.append(I(f"s_nop {need - 1}", "nop")); pos += need; nn += need
        res.append(ins)
        for r in ins.wr: lw[r] = (pos, k)
        if k == "mfma":
            for r in ins.rdc: lc[r] = pos
        if k == "store":
            for r in ins.rd: ls[r] = pos
        if ins.tag == "m0": m0w = pos
        if k == "nop": pos += int(ins.text.split()[1]) + 1
        else: pos += 1
    if verbose: print("hazard nops inserted (states):", nn, file=sys.stderr)
    return res

def srd(P, d, lo, off, n):
    P(f"s_add_u32 s{d}, s{lo}, {off}"); P(f"s_addc_u32 s{d+1}, s{lo+1}, 0")
    P(f"s_mov_b32 s{d+2}, {n}"); P(f"s_mov_b32 s{d+3}, 0x20000")

def kd(P, name, vg, acc):
    P(f".amdhsa_kernel {name}")
    for l in [f"next_free_vgpr {vg}", "next_free_sgpr 102", f"accum_offset {acc}", "group_segment_fixed_size 0", "kernarg_size 104",
              "user_sgpr_count 2", "user_sgpr_kernarg_segment_ptr 1", "system_sgpr_workgroup_id_x 1"]:
        P("  .amdhsa_" + l)
    P(".end_amdhsa_kernel")

PART_BYTES = 16 * 7 * 262144

def gen(cfg):
    L = []; P = L.append
    hdr = open("cdna_kernels/" + NAME + ".s.ref").read().split("\n") if False else []
    P("; @launch kernel=attn_kernel grid=(256,1,1) block=(256,1,1) lds=163840")
    P("; @launch kernel=reduce_kernel grid=(448,1,1) block=(256,1,1) lds=0")
    P('.amdgcn_target "amdgcn-amd-amdhsa--gfx950"')
    P(".text"); P(".globl attn_kernel"); P(".p2align 8"); P(".type attn_kernel,@function"); P("attn_kernel:")
    P("s_cmp_ge_u32 s2, 256"); P("s_cbranch_scc1 L_end")
    if cfg.stamps: P(f"s_memrealtime s[{S_STAMP}:{S_STAMP+1}]")
    P("s_lshr_b32 s3, s2, 7")
    P("s_mul_i32 s4, s3, 40")
    P("s_add_u32 s4, s0, s4"); P("s_addc_u32 s5, s1, 0")
    P("s_load_dwordx8 s[40:47], s[4:5], 0")
    P("s_load_dwordx2 s[48:49], s[4:5], 32")
    P("s_load_dwordx2 s[50:51], s[0:1], 96")
    P("s_and_b32 s52, s2, 7")
    P("s_bfe_u32 s53, s2, 0x30003")
    P("s_bfe_u32 s54, s2, 0x10006")
    P("s_lshl_b32 s55, s52, 1"); P("s_add_u32 s55, s55, s54")
    P("s_lshl_b32 s56, s53, 3"); P("s_add_u32 s56, s56, s52")
    P("s_lshl_b32 s57, s53, 4"); P("s_add_u32 s57, s57, s55")
    P("s_cmp_eq_u32 s3, 0"); P("s_cselect_b32 s56, s56, s57"); P("s_lshl_b32 s56, s56, 18")
    P("s_mul_i32 s57, s53, 114688")
    P("s_lshl_b32 s58, s55, 9")
    P("s_mul_i32 s59, s55, 229376")
    P("s_lshl_b32 s60, s3, 3"); P("s_add_u32 s60, s60, s53"); P(f"s_mul_i32 s60, s60, {7*262144}")
    P("s_lshl_b32 s61, s55, 10"); P("s_add_u32 s60, s60, s61")
    if cfg.rot:
        P("s_lshl_b32 s62, s54, 2"); P("s_add_u32 s62, s62, s53"); P("s_cmp_ge_u32 s62, 7"); P("s_cselect_b32 s63, 7, 0"); P("s_sub_u32 s62, s62, s63")
    else:
        P("s_mov_b32 s62, 0")
    P("v_lshrrev_b32 v1, 6, v0")
    P("v_and_b32 v0, 63, v0")
    P("v_readfirstlane_b32 s6, v1")
    P("v_lshrrev_b32 v2, 5, v0")
    P("v_and_b32 v3, 31, v0")
    P(f"s_lshl_b32 s{S_WB}, s6, 12")
    P("s_and_b32 s7, s6, 1"); P("s_lshl_b32 s7, s7, 4"); P("s_lshr_b32 s63, s6, 1"); P("s_lshl_b32 s63, s63, 2"); P("s_add_u32 s7, s7, s63")
    P("v_add_u32 v56, s7, v2"); P("v_lshlrev_b32 v56, 13, v56")
    P("v_lshlrev_b32 v57, 1, v2"); P("v_xor_b32 v57, v57, v3")
    P("v_lshlrev_b32 v58, 9, v2"); P(f"v_add_u32 v58, s{S_WB}, v58")
    for p in range(4):
        P(f"v_xor_b32 v59, {p * 4}, v57")
        P(f"v_lshl_add_u32 v{KVOFF + p}, v59, 4, v58")
        P(f"v_lshl_add_u32 v{WQOFF + p}, v59, 4, v56")
        kk = [0, 2, 8, 10][p]
        if p: P(f"v_add_u32 v{WQOFF + p}, {kk * 8192 - 1024 * p}, v{WQOFF + p}")
    P("v_and_b32 v60, 15, v0"); P("v_lshrrev_b32 v61, 4, v0")
    P("s_lshl_b32 s7, s6, 5"); P("v_add_u32 v62, s7, v60"); P("v_mul_u32_u24 v62, 896, v62")
    P(f"v_lshl_add_u32 v{XOFF}, v61, 4, v62"); P(f"v_add_u32 v{XOFF + 1}, {16 * 896}, v{XOFF}")
    P("s_waitcnt lgkmcnt(0)")
    srd(P, S_X, 40, "s57", 114688)
    srd(P, S_WQ, 46, "s58", 448 * 8192); P(f"s_sub_u32 s{S_WQ+2}, s{S_WQ+2}, s58")
    srd(P, S_K, 42, "s56", 262144)
    srd(P, S_V, 44, "s56", 262144)
    srd(P, S_WO, 48, "s59", 229376)
    srd(P, S_WS, 50, "s60", PART_BYTES); P(f"s_sub_u32 s{S_WS+2}, s{S_WS+2}, s60")
    if cfg.stamps: P("s_mov_b32 s4, s50"); P("s_mov_b32 s5, s51")
    P("s_mov_b32 s7, s62")
    for u in range(7):
        P(f"s_lshl_b32 s{S_TWQ + u}, s7, 19"); P(f"s_lshl_b32 s{S_T128 + u}, s7, 7"); P(f"s_lshl_b32 s{S_TST + u}, s7, 18")
        if u < 6: P("s_add_u32 s7, s7, 1"); P("s_cmp_eq_u32 s7, 7"); P("s_cselect_b32 s7, 0, s7")
    body, pro_end, rare = build_main(cfg)
    body = body
    late = []
    A = late.append
    A(f"s_mov_b32 s{S_SC}, {hex(f2u(1.4426950408889634 / 16.0))}")
    A(f"s_mov_b32 s{S_MASK}, 0x40004000"); A(f"s_mov_b32 s{S_BIAS}, {hex(f2u(-BIAS))}")
    A("v_lshrrev_b32 v56, 2, v0")
    A("v_and_b32 v57, 3, v0")
    A("v_and_b32 v58, 1, v57"); A("v_lshrrev_b32 v59, 1, v57"); A("v_lshl_or_b32 v57, v58, 1, v59")
    A("v_and_b32 v58, 7, v56"); A("v_lshlrev_b32 v58, 5, v58")
    A("v_lshl_or_b32 v58, v56, 9, v58"); A("v_lshl_or_b32 v58, v57, 3, v58")
    for r in range(3):
        for t in range(8): A(f"v_xor_b32 v{VA(r, t)}, {hex(t * 32 | r << 16)}, v58")
    A("v_bfe_u32 v58, v56, 1, 2"); A("v_lshlrev_b32 v58, 5, v58"); A("v_lshl_or_b32 v58, v56, 7, v58"); A(f"v_lshl_or_b32 v{WABASE}, v57, 3, v58")
    A("v_and_b32 v58, 7, v60"); A("v_lshlrev_b32 v58, 1, v58"); A("v_xor_b32 v58, v58, v61"); A("v_lshlrev_b32 v58, 4, v58"); A("v_lshl_or_b32 v58, v60, 9, v58")
    for r in range(3):
        for s in range(4): A(f"v_xor_b32 v{KA(r, s)}, {hex(s * 64 | r << 16)}, v58")
    A("v_lshrrev_b32 v56, 3, v0"); A("v_and_b32 v57, 3, v56"); A("v_lshrrev_b32 v58, 2, v56"); A("v_lshl_or_b32 v57, v58, 3, v57")
    A("s_lshl_b32 s7, s6, 5"); A("v_add_u32 v57, s7, v57"); A("v_mul_u32_u24 v57, 896, v57")
    A("v_and_b32 v58, 6, v56"); A("v_and_b32 v59, 7, v0"); A("v_xor_b32 v58, v58, v59"); A(f"v_lshl_add_u32 v{WOOFF}, v58, 4, v57")
    for p in range(1, 4):
        A(f"v_add_u32 v{WOOFF + p}, {(16 * (p >> 1) + 4 * (p & 1)) * 896 - 1024 * p}, v{WOOFF}")
    A("s_lshl_b32 s7, s6, 16"); A(f"v_lshlrev_b32 v{STOFF}, 4, v0"); A(f"v_add_u32 v{STOFF}, s7, v{STOFF}")
    A("v_mov_b32 v56, 0x3f803f80")
    for r in range(4): A(f"v_accvgpr_write_b32 a{ONES + r}, v56")
    seq = body[:pro_end] + [I(t, "salu") for t in late] + body[pro_end:]
    seq = fix_hazards(seq, cfg.verbose)
    for ins in seq: P(ins.text)
    if cfg.stamps:
        P("s_waitcnt vmcnt(0)"); P(f"s_memrealtime s[{S_STAMP + 22}:{S_STAMP + 23}]"); P("s_waitcnt lgkmcnt(0)")
        P(f"s_add_u32 s8, s4, {64 << 20}"); P("s_addc_u32 s9, s5, 0"); P("s_mov_b32 s10, 0x100000"); P("s_mov_b32 s11, 0x20000")
        P("s_lshl_b32 s7, s2, 2"); P("s_add_u32 s7, s7, s6"); P("s_lshl_b32 s7, s7, 6"); P("v_mov_b32 v1, s7")
        P("s_mov_b64 exec, 1")
        for k in range(12):
            P(f"v_mov_b32 v2, s{S_STAMP + 2*k}"); P(f"buffer_store_dword v2, v1, s[8:11], 0 offen offset:{4*k}"); P("s_nop 1")
    P("L_end:"); P("s_endpgm")
    for ins in rare: P(ins.text)
    P(".p2align 8"); P(".globl reduce_kernel"); P(".type reduce_kernel,@function"); P("reduce_kernel:")
    P("s_cmp_ge_u32 s2, 448"); P("s_cbranch_scc1 R_end")
    P("s_load_dwordx2 s[4:5], s[0:1], 96"); P("s_load_dwordx2 s[6:7], s[0:1], 80")
    P("v_lshrrev_b32 v1, 6, v0"); P("v_and_b32 v0, 63, v0"); P("v_readfirstlane_b32 s16, v1")
    P("v_lshlrev_b32 v2, 4, v0")
    P("s_lshl_b32 s17, s2, 2"); P("s_add_u32 s17, s17, s16"); P("s_lshl_b32 s17, s17, 14")
    P("s_lshr_b32 s18, s2, 2")
    P("s_mul_i32 s19, s18, 9363"); P("s_lshr_b32 s19, s19, 16")
    P("s_mul_i32 s20, s19, 7"); P("s_sub_u32 s20, s18, s20")
    P("s_and_b32 s21, s2, 3")
    P("s_waitcnt lgkmcnt(0)")
    srd(P, 8, 4, "s17", 16384)
    srd(P, 12, 6, 0, 8 * 128 * 896 * 2)
    for h in range(16):
        if h % 4 == 0: P(f"s_mov_b32 s22, {h * 1024}")
        P(f"buffer_load_dwordx4 v[{16 + h*4}:{16 + h*4 + 3}], v2, s[8:11], s22 offen offset:{(h % 4) * 1024}{cfg.rdflag}")
    P("s_and_b32 s23, s19, 7"); P("s_lshl_b32 s23, s23, 7"); P("s_lshl_b32 s24, s21, 5"); P("s_add_u32 s23, s23, s24")
    P("s_and_b32 s24, s16, 1"); P("s_lshl_b32 s24, s24, 4"); P("s_add_u32 s23, s23, s24")
    P("s_lshr_b32 s24, s19, 3"); P("s_mul_i32 s24, s24, 896"); P("s_lshl_b32 s25, s20, 7"); P("s_add_u32 s24, s24, s25")
    P("s_lshr_b32 s25, s16, 1"); P("s_lshl_b32 s25, s25, 6"); P("s_add_u32 s24, s24, s25")
    P("v_and_b32 v3, 15, v0"); P("v_add_u32 v3, s23, v3"); P("v_mul_u32_u24 v3, 1792, v3")
    P("v_lshrrev_b32 v4, 4, v0"); P("v_lshl_add_u32 v3, v4, 4, v3")
    for h in range(16):
        P(f"s_waitcnt vmcnt({15 - h})")
        for r in range(4):
            v = 16 + h * 4 + r
            if h == 0:
                P(f"v_lshlrev_b32 v{8 + 2*r}, 16, v{v}"); P(f"v_and_b32 v{9 + 2*r}, 0xffff0000, v{v}")
            else:
                P(f"v_lshlrev_b32 v5, 16, v{v}"); P(f"v_and_b32 v{v}, 0xffff0000, v{v}")
                P(f"v_add_f32 v{8 + 2*r}, v{8 + 2*r}, v5"); P(f"v_add_f32 v{9 + 2*r}, v{9 + 2*r}, v{v}")
    for r in range(4): P(f"v_cvt_pk_bf16_f32 v{4 + r}, v{8 + 2*r}, v{9 + 2*r}")
    P("s_nop 1"); P("v_permlane32_swap_b32 v4, v6"); P("v_permlane32_swap_b32 v5, v7")
    P("buffer_store_dwordx4 v[4:7], v3, s[12:15], s24 offen")
    P("R_end:"); P("s_endpgm")
    P('.section .rodata,"a"'); P(".p2align 6")
    kd(P, "attn_kernel", 512, 256)
    P(".p2align 6")
    kd(P, "reduce_kernel", 80, 80)
    return "\n".join(L) + "\n"

if __name__ == "__main__":
    cfg = Cfg(); cfg.verbose = True
    outp = sys.argv[1]
    for kv in sys.argv[2:]:
        k, v = kv.split("=", 1)
        setattr(cfg, k, eval(v))
    open(outp, "w").write(gen(cfg))
```

```python
import sys, argparse
NAME = "concat_heads__gqa_block_cached__mha_block_cached__near_ridge"

def rng(t, n, c=1): return [(t, n + i) for i in range(c)]
def rt(t, n, c=1): return f"{t}{n}" if c == 1 else f"{t}[{n}:{n+c-1}]"

class I:
    __slots__ = ("text", "kind", "rd", "wr", "rdc", "earliest", "deadline", "pre", "tag", "after")
    def __init__(s, text, kind, rd=(), wr=(), rdc=(), earliest=-1, deadline=1 << 30, pre=(), tag=None, after=()):
        s.text = text; s.kind = kind; s.rd = list(rd); s.wr = list(wr); s.rdc = list(rdc)
        s.earliest = earliest; s.deadline = deadline; s.pre = list(pre); s.tag = tag; s.after = list(after)

def salu(text): return I(text, "salu")
def valu(op, d, *srcs, kind="valu"):
    rd = []; ts = []
    for x in srcs:
        if isinstance(x, int): rd.append(("v", x)); ts.append(f"v{x}")
        elif isinstance(x, tuple): rd.append(("v", x[1])); ts.append(f"{x[0]}v{x[1]}")
        else: ts.append(x)
    return I(f"{op} v{d}, " + ", ".join(ts), kind, rd=rd, wr=[("v", d)])
def trans(op, d, s): return valu(op, d, s, kind="trans")
def accw(a, v): return I(f"v_accvgpr_write_b32 a{a}, v{v}", "valu", rd=[("v", v)], wr=[("a", a)])
def swap32(a, b): return I(f"v_permlane32_swap_b32 v{a}, v{b}", "perm", rd=[("v", a), ("v", b)], wr=[("v", a), ("v", b)])
def swap16(a, b): return I(f"v_permlane16_swap_b32 v{a}, v{b}", "perm", rd=[("v", a), ("v", b)], wr=[("v", a), ("v", b)])
def mfma(d, a, b, c):
    ct = "0" if c is None else rt("v", c, 4)
    return I(f"v_mfma_f32_16x16x32_bf16 {rt('v', d, 4)}, {rt(a[0], a[1], 4)}, {rt(b[0], b[1], 4)}, {ct}", "mfma",
             rd=rng(a[0], a[1], 4) + rng(b[0], b[1], 4), wr=rng("v", d, 4), rdc=[] if c is None else rng("v", c, 4))

O0 = 128
def OT(s, qs, t): return O0 + s * 16 + qs * 8 + t * 4
def SB(par, qs, ks): return 96 + par * 16 + qs * 8 + ks * 4
def PB(par, qs): return 80 + par * 8 + qs * 4
def NM(qs): return 72 + qs * 4
def LA(qs): return 64 + qs * 4
E0 = 56
def VA(r, t): return 32 + r * 8 + t
def KA(r, s): return 20 + r * 4 + s
KVOFF = 16; WQOFF = 12; WOOFF = 8; XOFF = 6; WABASE = 5; STOFF = 4
TMP = 0
def QF(s, qs): return s * 8 + qs * 4
def XF(kt, qs): return 64 + kt * 8 + qs * 4
ONES = 176
RING0 = 192
def YT(cp, nt, qs): return (96 + nt * 8 + qs * 4) if cp == 0 else (O0 + (nt * 2 + qs) * 8 + 4)
S_X, S_K, S_V, S_WQ, S_WO, S_WS = 8, 12, 16, 20, 24, 28
S_WB = 32
S_SOFF = 33; S_SOFF2 = 34; S_SC = 35; S_MASK = 36; S_BIAS = 37
S_RET = 38
S_TWQ = 40; S_T128 = 48; S_TST = 56
S_STAMP = 64
BIAS = 8.0

class Cfg:
    ring = 14; lat = 7; nslots = 10
    kvflag = " nt"; wflag = ""; xflag = ""; stflag = " nt"; rdflag = " nt"
    early_kv = 6
    dma_space = 3
    stamps = False
    rot = True
    max_ahead = 10
    verbose = False
    npro = 12
    cpf = True
    kv_every = 1

def f2u(x):
    import struct
    return struct.unpack("<I", struct.pack("<f", x))[0]

def build_main(cfg):
    MF = []; FR = []; VQ = []
    tiles = []
    marks = {}
    def new_tile(name, **kw):
        t = dict(name=name, n=len(tiles), **kw); tiles.append(t); return t
    def frag(tile, reads):
        f = dict(id=len(FR), tile=tile, reads=reads, first=len(MF), last=None, earliest=-1); FR.append(f); return f
    def A(f): return ("a", RING0 + (f["id"] % cfg.ring) * 4)
    def add_m(ins, f=None):
        ins.tag = f; MF.append(ins)
        if f is not None: f["last"] = len(MF) - 1
        return len(MF) - 1
    def tr_tile(tile, bsel, first):
        for T in range(16):
            f = frag(tile, [("tr", "V", T & 7, u * 8192 + (T >> 3) * 256, u) for u in range(2)])
            for qs in range(2):
                d = OT(T >> 1, qs, T & 1)
                i = add_m(mfma(d, A(f), bsel(qs), None if first else d), f)
                marks[(tile["name"], T, qs)] = i
    def qk_tile(j):
        tile = new_tile(f"K{j}", kind="K", idx=j); par = j & 1
        marks[("K", j, "first")] = len(MF)
        for s in range(8):
            for ks in range(2):
                f = frag(tile, [("b128", "K", s & 3, ks * 8192 + (s >> 2) * 256, 0)])
                for qs in range(2):
                    d = SB(par, qs, ks)
                    c = d if s else (None if j < 2 else NM(qs))
                    i = add_m(mfma(d, A(f), ("a", QF(s, qs)), c), f)
                    marks.setdefault(("Quse", s, qs), i)
        marks[("K", j, "last")] = len(MF) - 1
    def pv_tile(j):
        tile = new_tile(f"V{j}", kind="V", idx=j); par = j & 1
        marks[("V", j, "first")] = len(MF)
        for qs in range(2):
            marks[("L", j, qs)] = add_m(mfma(LA(qs), ("a", ONES), ("v", PB(par, qs)), None if j == 0 else LA(qs)))
        tr_tile(tile, lambda qs: ("v", PB(par, qs)), j == 0)
        marks[("V", j, "last")] = len(MF) - 1
    for i in range(14):
        t = new_tile(f"W{i}", kind="W", idx=i)
        tr_tile(t, lambda qs: ("a", XF(i, qs)), i == 0)
    marks["qproj_end"] = len(MF) - 1
    qk_tile(0); qk_tile(1)
    for j in range(16):
        pv_tile(j)
        if j + 2 < 16: qk_tile(j + 2)
    marks["attn_end"] = len(MF) - 1
    for c in range(7):
        marks[("Y", c, "first")] = len(MF)
        for half in range(2):
            tile = new_tile(f"O{c}{'ab'[half]}", kind="O", idx=c, half=half)
            for s4 in range(4):
                s = half * 4 + s4
                for nt in range(4):
                    f = frag(tile, [("tr", "K", nt, s4 * 4096 + u * 2048, u) for u in range(2)])
                    for qs in range(2):
                        d = YT(c & 1, nt, qs)
                        i = add_m(mfma(d, A(f), ("v", OT(s, qs, 0)), None if s == 0 else d), f)
                        marks.setdefault(("Ouse", s, qs), i)
                        marks[("Ydone", c, nt, qs)] = i
    NM_ = len(MF)
    RAW = 4
    def q(ins, earliest, deadline):
        ins.earliest = earliest; ins.deadline = deadline; VQ.append(ins); return ins
    for s in range(8):
        for qs in range(2):
            e = marks[("W13", 2 * s + 1, qs)] + RAW; dl = marks[("Quse", s, qs)] - 1
            b = OT(s, qs, 0)
            for r in range(8): q(valu("v_mul_f32", b + r, f"s{S_SC}", b + r), e, dl)
            for r in range(4): q(valu("v_cvt_pk_bf16_f32", b + r, b + 2 * r, b + 2 * r + 1), e, dl)
        for qs in range(2):
            e = marks[("W13", 2 * s + 1, qs)] + RAW; dl = marks[("Quse", s, qs)] - 1
            b = OT(s, qs, 0)
            q(swap32(b, b + 2), e, dl); q(swap32(b + 1, b + 3), e, dl)
        for qs in range(2):
            e = marks[("W13", 2 * s + 1, qs)] + RAW; dl = marks[("Quse", s, qs)] - 1
            b = OT(s, qs, 0)
            for r in range(4): q(accw(QF(s, qs) + r, b + r), e, dl)
    def rowmax(par, emit):
        for qs in range(2):
            b = SB(par, qs, 0); t = E0 + qs
            emit(valu("v_max3_f32", t, b, b + 1, b + 2));
        for k in (3, 5):
            for qs in range(2):
                b = SB(par, qs, 0); t = E0 + qs
                emit(valu("v_max3_f32", t, t, b + k, b + k + 1))
        for qs in range(2):
            b = SB(par, qs, 0); t = E0 + qs
            emit(valu("v_max_f32", t, t, b + 7))
        for sw in (swap32, swap16):
            for qs in range(2): emit(valu("v_mov_b32", E0 + 2 + qs, E0 + qs))
            for qs in range(2): emit(sw(E0 + qs, E0 + 2 + qs))
            for qs in range(2): emit(valu("v_max_f32", E0 + qs, E0 + qs, E0 + 2 + qs))
    def expcvt(par, emit, ebase=E0, ne=8):
        pend = None; k = 0
        for qs in range(2):
            for i in range(4):
                b = SB(par, qs, 0) + 2 * i
                e0 = ebase + (k % ne); e1 = ebase + ((k + 1) % ne); k += 2
                emit(trans("v_exp_f32", e0, b)); emit(trans("v_exp_f32", e1, b + 1))
                if pend: emit(pend)
                pend = valu("v_cvt_pk_bf16_f32", PB(par, qs) + i, e0, e1)
        emit(pend)
    stubs = []
    for j in range(16):
        par = j & 1
        e = marks[("K", j, "last")] + RAW; dl = marks[("V", j, "first")] - 1
        em = lambda ins: q(ins, e, dl)
        if j == 0:
            rowmax(0, em)
            for qs in range(2):
                for r in range(4): em(valu("v_sub_f32", NM(qs) + r, f"s{S_BIAS}", E0 + qs))
        if j < 2:
            for qs in range(2):
                for r in range(8): em(valu("v_add_f32", SB(par, qs, 0) + r, SB(par, qs, 0) + r, NM(qs)))
        expcvt(par, em)
        if j > 0:
            p = PB(par, 0)
            em(valu("v_or3_b32", TMP, p, p + 1, p + 2)); em(valu("v_or3_b32", TMP + 1, p + 3, p + 4, p + 5))
            em(valu("v_or3_b32", TMP, TMP, p + 6, p + 7))
            x = valu("v_bitop3_b32", TMP, TMP, TMP + 1, f"s{S_MASK}"); x.text += " bitop3:0xa8"; em(x)
            em(I(f"v_cmp_ne_u32 vcc, 0, v{TMP}", "valu", rd=[("v", TMP)]))
            br = I(f"s_cbranch_vccnz L_stub{j}", "br", after=[I(f"L_back{j}:", "label")])
            q(br, max(e, marks[("V", j - 1, "last")]), dl)
            stubs.append((j, par))
        if j == 15:
            for r in range(3):
                for nt in range(4):
                    q(valu("v_xor_b32", KA(r, nt), hex(nt * 32 | r << 16), WABASE), marks[("K", 15, "last")], dl)
            marks["wa_ready"] = dl
    for qs in range(2):
        q(trans("v_rcp_f32", E0 + qs, LA(qs)), marks[("L", 15, qs)] + RAW, marks[("Ouse", 0, 0)] - 1)
    for s in range(8):
        for qs in range(2):
            e = marks[("V15", 2 * s + 1, qs)] + RAW; dl = marks[("Ouse", s, qs)] - 1
            b = OT(s, qs, 0)
            for r in range(8): q(valu("v_mul_f32", b + r, b + r, E0 + qs), e, dl)
            for r in range(4): q(valu("v_cvt_pk_bf16_f32", b + r, b + 2 * r, b + 2 * r + 1), e, dl)
    k = 0
    for c in range(7):
        dl = marks[("Y", c + 2, "first")] - 1 if c + 2 < 7 else NM_ - 1
        pend = None
        for np_ in range(2):
            for qs in range(2):
                e = min(marks[("Ydone", c, 2 * np_ + 1, qs)] + RAW, NM_ - 1)
                st = 72 + (k % 6) * 4; k += 1
                for t in range(2):
                    y = YT(c & 1, 2 * np_ + t, qs)
                    q(valu("v_cvt_pk_bf16_f32", st + 2 * t, y, y + 1), e, dl)
                    q(valu("v_cvt_pk_bf16_f32", st + 2 * t + 1, y + 2, y + 3), e, dl)
                j = np_ * 2 + qs
                q(I(f"buffer_store_dwordx4 {rt('v', st, 4)}, v{STOFF}, s[{S_WS}:{S_WS+3}], s{S_SOFF2} offen{cfg.stflag}", "store",
                    rd=rng("v", st, 4) + [("v", STOFF)], pre=[salu(f"s_add_u32 s{S_SOFF2}, s{S_TST + c}, {j * 16384}")]), e, dl)
    m = 1 << 30
    for ins in reversed(VQ):
        m = min(m, ins.deadline); ins.deadline = m
    for f in FR:
        if f["tile"]["kind"] == "O": f["earliest"] = marks["wa_ready"] + 1
    byname = {t["name"]: t for t in tiles}
    order = [t["name"] for t in tiles]
    if cfg.early_kv:
        kv = [n for n in order if n[0] in "KV"][:cfg.early_kv]
        rest = [n for n in order if n not in kv]
        nw = cfg.nslots - cfg.early_kv
        order = rest[:nw]; rest = rest[nw:]
        while kv:
            order.append(kv.pop(0))
            for _ in range(cfg.kv_every):
                order.append(rest.pop(0))
        order += rest
    if getattr(cfg, "order", None): order = cfg.order
    def dma_ops(t, slot):
        k = t["kind"]; ops = []
        if k == "W":
            i = t["idx"]
            if i % 2 == 0:
                for kk in range(2):
                    for qs in range(2):
                        pass
                for qs in range(2):
                    for kk in range(2):
                        a = XF(i + kk, qs)
                        ops.append(I(f"buffer_load_dwordx4 {rt('a', a, 4)}, v{XOFF + qs}, s[{S_X}:{S_X+3}], s{S_T128 + i // 2} offen offset:{kk * 64}{cfg.xflag}",
                                     "vmem", rd=[("v", XOFF + qs)], wr=rng("a", a, 4), tag=("x", i + kk)))
            pre = [salu(f"s_add_u32 s{S_SOFF}, s{S_TWQ + i // 2}, {(i & 1) * 262144}")]
            srd, vo, fl = S_WQ, WQOFF, cfg.wflag
        elif k in "KV":
            pre = [salu(f"s_mov_b32 s{S_SOFF}, {t['idx'] * 16384}")]
            srd, vo, fl = (S_K if k == "K" else S_V), KVOFF, cfg.kvflag
        else:
            pre = [salu(f"s_add_u32 s{S_SOFF}, s{S_T128 + t['idx']}, {t['half'] * 114688}")]
            srd, vo, fl = S_WO, WOOFF, cfg.wflag
        pre.insert(0, I(f"s_add_u32 m0, s{S_WB}, {slot * 16384}", "salu", tag="m0"))
        for p in range(4):
            ops.append(I(f"buffer_load_dwordx4 v{vo + p}, s[{srd}:{srd+3}], s{S_SOFF} offen offset:{p * 1024}{fl} lds", "dma",
                         rd=[("v", vo + p)], pre=pre if p == 0 else [], tag=("tile", t["n"])))
        return ops

    out = []
    ds_list = []
    ds_cov = [0]
    vm_list = []
    vm_cov = [0]
    free = list(range(cfg.nslots)); MQ = []; oi = [0]; freed_upto = [0]
    bar_done = [-1]
    bar_state = [0]
    last_dma = [-100]
    stats = dict(over=0, dsds=0, waits=0)
    def refill():
        while free and oi[0] < len(order):
            t = byname[order[oi[0]]]
            t["slot"] = free.pop(0); MQ.extend(dma_ops(t, t["slot"])); oi[0] += 1
    def emit(ins):
        out.append(ins)
        if ins.kind in ("vmem", "dma", "store"): vm_list.append(ins.tag)
        for a in ins.after: out.append(a)
    def emit_vm(ins):
        for p in ins.pre: emit(p)
        ins.pre = []; emit(ins)
    DS = [(f, r) for f in FR for r in f["reads"]]
    di = [0]; vi = [0]
    def ds_ins(f, r):
        kind, at, idx, imm, u = r
        slot = f["tile"]["slot"]; reg = (VA if at == "V" else KA)(slot >> 2, idx); off = (slot & 3) * 16384 + imm
        a = A(f)[1]
        if kind == "tr": return I(f"ds_read_b64_tr_b16 {rt('a', a + 2 * u, 2)}, v{reg} offset:{off}", "ds", rd=[("v", reg)], wr=rng("a", a + 2 * u, 2))
        return I(f"ds_read_b128 {rt('a', a, 4)}, v{reg} offset:{off}", "ds", rd=[("v", reg)], wr=rng("a", a, 4))
    def ring_ok(f, g):
        if f["earliest"] > g: return False
        return f["id"] < cfg.ring or FR[f["id"] - cfg.ring]["last"] <= g
    def ds_ready(g):
        if di[0] >= len(DS): return False
        f, r = DS[di[0]]
        return ring_ok(f, g) and f["tile"]["n"] <= bar_done[0]
    def emit_ds(g):
        f, r = DS[di[0]]; emit(ds_ins(f, r)); ds_list.append(g); f["lastrd"] = len(ds_list) - 1; f["tile"]["lastrd"] = len(ds_list) - 1; di[0] += 1
    def vm_wait(t):
        while any(x.tag == ("tile", t["n"]) for x in MQ):
            emit_vm(MQ.pop(0)); stats["over"] += 1
        idx = max(i for i, x in enumerate(vm_list) if x == ("tile", t["n"]))
        if idx < vm_cov[0]: return
        n = min(len(vm_list) - 1 - idx, 63)
        emit(I(f"s_waitcnt vmcnt({n})", "wait")); vm_cov[0] = len(vm_list) - n
    def barrier(t):
        emit(I("s_barrier", "bar")); bar_done[0] = t["n"]
        while freed_upto[0] < len(tiles):
            o = tiles[freed_upto[0]]
            if o["n"] < t["n"] and "lastrd" in o and o["lastrd"] < ds_cov[0] and not any(ff["tile"] is o for ff, _ in DS[di[0]:di[0] + 40]):
                free.append(o["slot"]); freed_upto[0] += 1
            else: break
        refill()
    def next_bar_tile(g, look=0):
        if di[0] >= len(DS): return None
        f, r = DS[min(di[0] + look, len(DS) - 1)]
        if f["tile"]["n"] > bar_done[0] and ring_ok(f, g + 2): return tiles[bar_done[0] + 1]
        return None
    def lgkm_wait(f, g):
        need = f["lastrd"] + 1
        if need <= ds_cov[0]: return False
        cov = need
        while cov < len(ds_list) and ds_list[cov] <= g - cfg.lat: cov += 1
        cov = max(cov, len(ds_list) - 15)
        emit(I(f"s_waitcnt lgkmcnt({len(ds_list) - cov})", "wait")); ds_cov[0] = cov; stats["waits"] += 1
        return True
    def stamp(k):
        if cfg.stamps: emit(I(f"s_memrealtime s[{S_STAMP + 2*k}:{S_STAMP + 2*k + 1}]", "smem"))
    stamp_at = {}
    if cfg.stamps:
        pts = [0, marks["qproj_end"], marks[("V", 0, "first")], marks[("V", 4, "first")], marks[("V", 8, "first")], marks[("V", 12, "first")], marks["attn_end"],
               marks[("Y", 1, "first")], marks[("Y", 4, "first")], NM_ - 1]
        for k, p in enumerate(pts): stamp_at[p] = k + 1
    refill()
    for _ in range(cfg.npro): emit_vm(MQ.pop(0))
    pro_end = len(out)
    for g in range(-1, NM_):
        if g >= 0: emit(MF[g])
        if g in stamp_at:
            stamp(stamp_at[g]); emit(I("s_waitcnt lgkmcnt(0)", "wait")); ds_cov[0] = len(ds_list)
        nxt = MF[g + 1] if g + 1 < NM_ else None
        nf = nxt.tag if nxt is not None else None
        if nf is not None and nf["first"] == g + 1:
            if "lastrd" not in nf or any(ff is nf for ff, _ in DS[di[0]:di[0] + 2]):
                while any(ff is nf for ff, _ in DS[di[0]:di[0] + 4]) or (g == -1 and ds_ready(g) and len(ds_list) < 12):
                    f, r = DS[di[0]]
                    if f["tile"]["n"] > bar_done[0]:
                        t = tiles[bar_done[0] + 1]
                        if bar_state[0] == 0: vm_wait(t)
                        bar_state[0] = 0; barrier(t)
                    emit_ds(g); stats["over"] += 1
        sc = 0
        if nf is not None and nf["first"] == g + 1:
            if lgkm_wait(nf, g): sc += 1
        if sc == 0:
            t = next_bar_tile(g, 2)
            if t is not None and bar_state[0] == 0 and not any(x.tag == ("tile", t["n"]) for x in MQ):
                vm_wait(t); bar_state[0] = 1; sc += 1
            elif bar_state[0] == 1 and next_bar_tile(g, 0) is not None:
                barrier(tiles[bar_done[0] + 1]); bar_state[0] = 0; sc += 1
        if sc == 0 and MQ and MQ[0].pre:
            emit(MQ[0].pre.pop(0)); sc += 1
        if sc == 0 and vi[0] < len(VQ) and VQ[vi[0]].pre and VQ[vi[0]].earliest <= g:
            emit(VQ[vi[0]].pre.pop(0)); sc += 1
        if sc == 0 and vi[0] < len(VQ) and VQ[vi[0]].kind == "br" and VQ[vi[0]].earliest <= g:
            emit(VQ[vi[0]]); vi[0] += 1; sc += 1
        def slack(k):
            if di[0] + k >= len(DS): return 1 << 20
            return DS[di[0] + k][0]["first"] - 1 - cfg.lat - g
        def vq():
            if vi[0] < len(VQ) and VQ[vi[0]].earliest <= g: return VQ[vi[0]]
            return None
        slots = 2
        v = vq()
        dma_ok = MQ and not MQ[0].pre and g - last_dma[0] >= cfg.dma_space and not (out[-1].tag == "m0")
        urgent = ds_ready(g) and slack(0) <= 0
        if not urgent and dma_ok:
            emit_vm(MQ.pop(0)); last_dma[0] = g; slots = 0
        elif not urgent and v is not None and v.kind in ("trans", "store") and not v.pre:
            emit(v); vi[0] += 1; slots = 0
        else:
            if ds_ready(g): emit_ds(g); slots -= 1
            v = vq()
            plain = v is not None and v.kind in ("valu", "perm")
            if slots == 1 and ds_ready(g) and (slack(0) <= 0 or not plain):
                emit_ds(g); slots -= 1; stats["dsds"] += 1
            while slots > 0:
                v = vq()
                if v is not None and v.kind in ("valu", "perm"):
                    emit(v); vi[0] += 1; slots -= 1
                else: break
        while vi[0] < len(VQ) and VQ[vi[0]].deadline <= g:
            emit_vm(VQ[vi[0]]); vi[0] += 1; stats["over"] += 1
    assert di[0] == len(DS) and vi[0] == len(VQ) and not MQ and oi[0] == len(order)
    if cfg.verbose: print("sched stats", stats, "mfma", NM_, "ins", len(out), file=sys.stderr)

    rare = []
    for j, par in stubs:
        rare.append(I(f"L_stub{j}:", "label")); rare.append(I(f"s_call_b64 s[{S_RET}:{S_RET+1}], L_rescale{par}", "br")); rare.append(I(f"s_branch L_back{j}", "br"))
    for par in range(2):
        R = []
        R.append(I(f"L_rescale{par}:", "label")); R.append(I("s_nop 15", "nop"))
        rowmax(par, R.append)
        for qs in range(2):
            R.append(valu("v_sub_f32", E0 + qs, E0 + qs, f"s{S_BIAS}"))
            R[-1].text = f"v_subrev_f32 v{E0+qs}, s{S_BIAS}, v{E0+qs}"
        for qs in range(2): R.append(valu("v_max_f32", E0 + qs, "0", E0 + qs))
        for qs in range(2):
            x = trans("v_exp_f32", E0 + 2 + qs, ("-", E0 + qs)); R.append(x)
        for qs in range(2):
            for r in range(4): R.append(valu("v_sub_f32", NM(qs) + r, NM(qs) + r, E0 + qs))
            for pp in range(2):
                for r in range(8): R.append(valu("v_sub_f32", SB(pp, qs, 0) + r, SB(pp, qs, 0) + r, E0 + qs))
            for r in range(4): R.append(valu("v_mul_f32", LA(qs) + r, LA(qs) + r, E0 + 2 + qs))
            for s in range(8):
                for r in range(8): R.append(valu("v_mul_f32", OT(s, qs, 0) + r, OT(s, qs, 0) + r, E0 + 2 + qs))
        expcvt(par, R.append, ebase=E0 + 4, ne=4)
        R.append(I("s_nop 3", "nop")); R.append(I(f"s_setpc_b64 s[{S_RET}:{S_RET+1}]", "br"))
        rare += fix_hazards(R)
    return out, pro_end, rare

def fix_hazards(seq, verbose=False):
    res = []; pos = 0
    lw = {}
    lc = {}
    ls = {}
    m0w = -100; nn = 0
    for ins in seq:
        if ins.kind == "label": res.append(ins); continue
        need = 0
        def req(p, n):
            nonlocal need
            need = max(need, n - (pos - p - 1))
        k = ins.kind
        isv = k in ("valu", "trans", "perm")
        for r in ins.rd + ins.rdc:
            if r in lw:
                p, wk = lw[r]
                if k == "mfma":
                    if wk in ("valu", "trans", "perm"): req(p, 2)
                    elif wk == "mfma":
                        if r in ins.rd: req(p, 8)
                        elif not (ins.rdc == ins.wr and lw[r][0] == lw[ins.wr[0]][0]): req(p, 6)
                elif wk == "mfma": req(p, 8)
                elif wk == "trans" and k in ("valu", "perm"): req(p, 1)
                if k == "perm" and wk in ("valu", "trans", "perm"): req(p, 2)
        for r in ins.wr:
            if k != "mfma" and r in lw and lw[r][1] == "mfma": req(lw[r][0], 8)
            if isv and r in lc: req(lc[r], 3)
            if isv and r in ls: req(ls[r], 2)
        if k == "dma": req(m0w, 1)
        if need > 0:
            res.append(I(f"s_nop {need - 1}", "nop")); pos += need; nn += need
        res.append(ins)
        for r in ins.wr: lw[r] = (pos, k)
        if k == "mfma":
            for r in ins.rdc: lc[r] = pos
        if k == "store":
            for r in ins.rd: ls[r] = pos
        if ins.tag == "m0": m0w = pos
        if k == "nop": pos += int(ins.text.split()[1]) + 1
        else: pos += 1
    if verbose: print("hazard nops inserted (states):", nn, file=sys.stderr)
    return res

def srd(P, d, lo, off, n):
    P(f"s_add_u32 s{d}, s{lo}, {off}"); P(f"s_addc_u32 s{d+1}, s{lo+1}, 0")
    P(f"s_mov_b32 s{d+2}, {n}"); P(f"s_mov_b32 s{d+3}, 0x20000")

def kd(P, name, vg, acc):
    P(f".amdhsa_kernel {name}")
    for l in [f"next_free_vgpr {vg}", "next_free_sgpr 102", f"accum_offset {acc}", "group_segment_fixed_size 0", "kernarg_size 104",
              "user_sgpr_count 2", "user_sgpr_kernarg_segment_ptr 1", "system_sgpr_workgroup_id_x 1"]:
        P("  .amdhsa_" + l)
    P(".end_amdhsa_kernel")

PART_BYTES = 16 * 7 * 262144

def gen(cfg):
    L = []; P = L.append
    hdr = open("cdna_kernels/" + NAME + ".s.ref").read().split("\n") if False else []
    P("; @launch kernel=attn_kernel grid=(256,1,1) block=(256,1,1) lds=163840")
    P("; @launch kernel=reduce_kernel grid=(448,1,1) block=(256,1,1) lds=0")
    P('.amdgcn_target "amdgcn-amd-amdhsa--gfx950"')
    P(".text"); P(".globl attn_kernel"); P(".p2align 8"); P(".type attn_kernel,@function"); P("attn_kernel:")
    P("s_cmp_ge_u32 s2, 256"); P("s_cbranch_scc1 L_end")
    if cfg.stamps: P(f"s_memrealtime s[{S_STAMP}:{S_STAMP+1}]")
    P("s_lshr_b32 s3, s2, 7")
    P("s_mul_i32 s4, s3, 40")
    P("s_add_u32 s4, s0, s4"); P("s_addc_u32 s5, s1, 0")
    P("s_load_dwordx8 s[40:47], s[4:5], 0")
    P("s_load_dwordx2 s[48:49], s[4:5], 32")
    P("s_load_dwordx2 s[50:51], s[0:1], 96")
    P("s_and_b32 s52, s2, 7")
    P("s_bfe_u32 s53, s2, 0x30003")
    P("s_bfe_u32 s54, s2, 0x10006")
    P("s_lshl_b32 s55, s52, 1"); P("s_add_u32 s55, s55, s54")
    P("s_lshl_b32 s56, s53, 3"); P("s_add_u32 s56, s56, s52")
    P("s_lshl_b32 s57, s53, 4"); P("s_add_u32 s57, s57, s55")
    P("s_cmp_eq_u32 s3, 0"); P("s_cselect_b32 s56, s56, s57"); P("s_lshl_b32 s56, s56, 18")
    P("s_mul_i32 s57, s53, 114688")
    P("s_lshl_b32 s58, s55, 9")
    P("s_mul_i32 s59, s55, 229376")
    P("s_lshl_b32 s60, s3, 3"); P("s_add_u32 s60, s60, s53"); P(f"s_mul_i32 s60, s60, {7*262144}")
    P("s_lshl_b32 s61, s55, 10"); P("s_add_u32 s60, s60, s61")
    if cfg.rot:
        P("s_lshl_b32 s62, s54, 2"); P("s_add_u32 s62, s62, s53"); P("s_cmp_ge_u32 s62, 7"); P("s_cselect_b32 s63, 7, 0"); P("s_sub_u32 s62, s62, s63")
    else:
        P("s_mov_b32 s62, 0")
    P("v_lshrrev_b32 v1, 6, v0")
    P("v_and_b32 v0, 63, v0")
    P("v_readfirstlane_b32 s6, v1")
    P("v_lshrrev_b32 v2, 5, v0")
    P("v_and_b32 v3, 31, v0")
    P(f"s_lshl_b32 s{S_WB}, s6, 12")
    P("s_and_b32 s7, s6, 1"); P("s_lshl_b32 s7, s7, 4"); P("s_lshr_b32 s63, s6, 1"); P("s_lshl_b32 s63, s63, 2"); P("s_add_u32 s7, s7, s63")
    P("v_add_u32 v56, s7, v2"); P("v_lshlrev_b32 v56, 13, v56")
    P("v_lshlrev_b32 v57, 1, v2"); P("v_xor_b32 v57, v57, v3")
    P("v_lshlrev_b32 v58, 9, v2"); P(f"v_add_u32 v58, s{S_WB}, v58")
    for p in range(4):
        P(f"v_xor_b32 v59, {p * 4}, v57")
        P(f"v_lshl_add_u32 v{KVOFF + p}, v59, 4, v58")
        P(f"v_lshl_add_u32 v{WQOFF + p}, v59, 4, v56")
        kk = [0, 2, 8, 10][p]
        if p: P(f"v_add_u32 v{WQOFF + p}, {kk * 8192 - 1024 * p}, v{WQOFF + p}")
    P("v_and_b32 v60, 15, v0"); P("v_lshrrev_b32 v61, 4, v0")
    P("s_lshl_b32 s7, s6, 5"); P("v_add_u32 v62, s7, v60"); P("v_mul_u32_u24 v62, 896, v62")
    P(f"v_lshl_add_u32 v{XOFF}, v61, 4, v62"); P(f"v_add_u32 v{XOFF + 1}, {16 * 896}, v{XOFF}")
    P("s_waitcnt lgkmcnt(0)")
    srd(P, S_X, 40, "s57", 114688)
    srd(P, S_WQ, 46, "s58", 448 * 8192); P(f"s_sub_u32 s{S_WQ+2}, s{S_WQ+2}, s58")
    srd(P, S_K, 42, "s56", 262144)
    srd(P, S_V, 44, "s56", 262144)
    srd(P, S_WO, 48, "s59", 229376)
    srd(P, S_WS, 50, "s60", PART_BYTES); P(f"s_sub_u32 s{S_WS+2}, s{S_WS+2}, s60")
    if cfg.stamps: P("s_mov_b32 s4, s50"); P("s_mov_b32 s5, s51")
    P("s_mov_b32 s7, s62")
    for u in range(7):
        P(f"s_lshl_b32 s{S_TWQ + u}, s7, 19"); P(f"s_lshl_b32 s{S_T128 + u}, s7, 7"); P(f"s_lshl_b32 s{S_TST + u}, s7, 18")
        if u < 6: P("s_add_u32 s7, s7, 1"); P("s_cmp_eq_u32 s7, 7"); P("s_cselect_b32 s7, 0, s7")
    body, pro_end, rare = build_main(cfg)
    body = body
    late = []
    A = late.append
    if cfg.cpf:
        A("s_getpc_b64 s[96:97]"); A("L_pc:")
        A("s_lshr_b32 s98, s2, 3"); A("s_lshl_b32 s98, s98, 2"); A("s_add_u32 s98, s98, s6"); A("s_lshl_b32 s98, s98, 9")
        A("s_min_u32 s98, s98, L_end-L_pc-512")
        A("s_add_u32 s96, s96, s98"); A("s_addc_u32 s97, s97, 0")
        for k in range(4): A(f"s_load_dword s{98 + k}, s[96:97], {k * 128}")
    A(f"s_mov_b32 s{S_SC}, {hex(f2u(1.4426950408889634 / 16.0))}")
    A(f"s_mov_b32 s{S_MASK}, 0x40004000"); A(f"s_mov_b32 s{S_BIAS}, {hex(f2u(-BIAS))}")
    A("v_lshrrev_b32 v56, 2, v0")
    A("v_and_b32 v57, 3, v0")
    A("v_and_b32 v58, 1, v57"); A("v_lshrrev_b32 v59, 1, v57"); A("v_lshl_or_b32 v57, v58, 1, v59")
    A("v_and_b32 v58, 7, v56"); A("v_lshlrev_b32 v58, 5, v58")
    A("v_lshl_or_b32 v58, v56, 9, v58"); A("v_lshl_or_b32 v58, v57, 3, v58")
    for r in range(3):
        for t in range(8): A(f"v_xor_b32 v{VA(r, t)}, {hex(t * 32 | r << 16)}, v58")
    A("v_bfe_u32 v58, v56, 1, 2"); A("v_lshlrev_b32 v58, 5, v58"); A("v_lshl_or_b32 v58, v56, 7, v58"); A(f"v_lshl_or_b32 v{WABASE}, v57, 3, v58")
    A("v_and_b32 v58, 7, v60"); A("v_lshlrev_b32 v58, 1, v58"); A("v_xor_b32 v58, v58, v61"); A("v_lshlrev_b32 v58, 4, v58"); A("v_lshl_or_b32 v58, v60, 9, v58")
    for r in range(3):
        for s in range(4): A(f"v_xor_b32 v{KA(r, s)}, {hex(s * 64 | r << 16)}, v58")
    A("v_lshrrev_b32 v56, 3, v0"); A("v_and_b32 v57, 3, v56"); A("v_lshrrev_b32 v58, 2, v56"); A("v_lshl_or_b32 v57, v58, 3, v57")
    A("s_lshl_b32 s7, s6, 5"); A("v_add_u32 v57, s7, v57"); A("v_mul_u32_u24 v57, 896, v57")
    A("v_and_b32 v58, 6, v56"); A("v_and_b32 v59, 7, v0"); A("v_xor_b32 v58, v58, v59"); A(f"v_lshl_add_u32 v{WOOFF}, v58, 4, v57")
    for p in range(1, 4):
        A(f"v_add_u32 v{WOOFF + p}, {(16 * (p >> 1) + 4 * (p & 1)) * 896 - 1024 * p}, v{WOOFF}")
    A("s_lshl_b32 s7, s6, 16"); A(f"v_lshlrev_b32 v{STOFF}, 4, v0"); A(f"v_add_u32 v{STOFF}, s7, v{STOFF}")
    A("v_mov_b32 v56, 0x3f803f80")
    for r in range(4): A(f"v_accvgpr_write_b32 a{ONES + r}, v56")
    seq = body[:pro_end] + [I(t, "label" if t.endswith(":") else "salu") for t in late] + body[pro_end:]
    seq = fix_hazards(seq, cfg.verbose)
    for ins in seq: P(ins.text)
    if cfg.stamps:
        P("s_waitcnt vmcnt(0)"); P(f"s_memrealtime s[{S_STAMP + 22}:{S_STAMP + 23}]"); P("s_waitcnt lgkmcnt(0)")
        P(f"s_add_u32 s8, s4, {64 << 20}"); P("s_addc_u32 s9, s5, 0"); P("s_mov_b32 s10, 0x100000"); P("s_mov_b32 s11, 0x20000")
        P("s_lshl_b32 s7, s2, 2"); P("s_add_u32 s7, s7, s6"); P("s_lshl_b32 s7, s7, 6"); P("v_mov_b32 v1, s7")
        P("s_mov_b64 exec, 1")
        for k in range(12):
            P(f"v_mov_b32 v2, s{S_STAMP + 2*k}"); P(f"buffer_store_dword v2, v1, s[8:11], 0 offen offset:{4*k}"); P("s_nop 1")
    P("L_end:"); P("s_endpgm")
    for ins in rare: P(ins.text)
    P(".p2align 8"); P(".globl reduce_kernel"); P(".type reduce_kernel,@function"); P("reduce_kernel:")
    P("s_cmp_ge_u32 s2, 448"); P("s_cbranch_scc1 R_end")
    P("s_load_dwordx2 s[4:5], s[0:1], 96"); P("s_load_dwordx2 s[6:7], s[0:1], 80")
    P("v_lshrrev_b32 v1, 6, v0"); P("v_and_b32 v0, 63, v0"); P("v_readfirstlane_b32 s16, v1")
    P("v_lshlrev_b32 v2, 4, v0")
    P("s_lshl_b32 s17, s2, 2"); P("s_add_u32 s17, s17, s16"); P("s_lshl_b32 s17, s17, 14")
    P("s_lshr_b32 s18, s2, 2")
    P("s_mul_i32 s19, s18, 9363"); P("s_lshr_b32 s19, s19, 16")
    P("s_mul_i32 s20, s19, 7"); P("s_sub_u32 s20, s18, s20")
    P("s_and_b32 s21, s2, 3")
    P("s_waitcnt lgkmcnt(0)")
    srd(P, 8, 4, "s17", 16384)
    srd(P, 12, 6, 0, 8 * 128 * 896 * 2)
    for h in range(16):
        if h % 4 == 0: P(f"s_mov_b32 s22, {h * 1024}")
        P(f"buffer_load_dwordx4 v[{16 + h*4}:{16 + h*4 + 3}], v2, s[8:11], s22 offen offset:{(h % 4) * 1024}{cfg.rdflag}")
    P("s_and_b32 s23, s19, 7"); P("s_lshl_b32 s23, s23, 7"); P("s_lshl_b32 s24, s21, 5"); P("s_add_u32 s23, s23, s24")
    P("s_and_b32 s24, s16, 1"); P("s_lshl_b32 s24, s24, 4"); P("s_add_u32 s23, s23, s24")
    P("s_lshr_b32 s24, s19, 3"); P("s_mul_i32 s24, s24, 896"); P("s_lshl_b32 s25, s20, 7"); P("s_add_u32 s24, s24, s25")
    P("s_lshr_b32 s25, s16, 1"); P("s_lshl_b32 s25, s25, 6"); P("s_add_u32 s24, s24, s25")
    P("v_and_b32 v3, 15, v0"); P("v_add_u32 v3, s23, v3"); P("v_mul_u32_u24 v3, 1792, v3")
    P("v_lshrrev_b32 v4, 4, v0"); P("v_lshl_add_u32 v3, v4, 4, v3")
    for h in range(16):
        P(f"s_waitcnt vmcnt({15 - h})")
        for r in range(4):
            v = 16 + h * 4 + r
            if h == 0:
                P(f"v_lshlrev_b32 v{8 + 2*r}, 16, v{v}"); P(f"v_and_b32 v{9 + 2*r}, 0xffff0000, v{v}")
            else:
                P(f"v_lshlrev_b32 v5, 16, v{v}"); P(f"v_and_b32 v{v}, 0xffff0000, v{v}")
                P(f"v_add_f32 v{8 + 2*r}, v{8 + 2*r}, v5"); P(f"v_add_f32 v{9 + 2*r}, v{9 + 2*r}, v{v}")
    for r in range(4): P(f"v_cvt_pk_bf16_f32 v{4 + r}, v{8 + 2*r}, v{9 + 2*r}")
    P("s_nop 1"); P("v_permlane32_swap_b32 v4, v6"); P("v_permlane32_swap_b32 v5, v7")
    P("buffer_store_dwordx4 v[4:7], v3, s[12:15], s24 offen")
    P("R_end:"); P("s_endpgm")
    P('.section .rodata,"a"'); P(".p2align 6")
    kd(P, "attn_kernel", 512, 256)
    P(".p2align 6")
    kd(P, "reduce_kernel", 80, 80)
    return "\n".join(L) + "\n"

if __name__ == "__main__":
    cfg = Cfg(); cfg.verbose = True
    outp = sys.argv[1]
    for kv in sys.argv[2:]:
        k, v = kv.split("=", 1)
        setattr(cfg, k, eval(v))
    open(outp, "w").write(gen(cfg))
```

```python
import sys, argparse
NAME = "concat_heads__gqa_block_cached__mha_block_cached__near_ridge"

def rng(t, n, c=1): return [(t, n + i) for i in range(c)]
def rt(t, n, c=1): return f"{t}{n}" if c == 1 else f"{t}[{n}:{n+c-1}]"

class I:
    __slots__ = ("text", "kind", "rd", "wr", "rdc", "earliest", "deadline", "pre", "tag", "after")
    def __init__(s, text, kind, rd=(), wr=(), rdc=(), earliest=-1, deadline=1 << 30, pre=(), tag=None, after=()):
        s.text = text; s.kind = kind; s.rd = list(rd); s.wr = list(wr); s.rdc = list(rdc)
        s.earliest = earliest; s.deadline = deadline; s.pre = list(pre); s.tag = tag; s.after = list(after)

def salu(text): return I(text, "salu")
def valu(op, d, *srcs, kind="valu"):
    rd = []; ts = []
    for x in srcs:
        if isinstance(x, int): rd.append(("v", x)); ts.append(f"v{x}")
        elif isinstance(x, tuple): rd.append(("v", x[1])); ts.append(f"{x[0]}v{x[1]}")
        else: ts.append(x)
    return I(f"{op} v{d}, " + ", ".join(ts), kind, rd=rd, wr=[("v", d)])
def trans(op, d, s): return valu(op, d, s, kind="trans")
def accw(a, v): return I(f"v_accvgpr_write_b32 a{a}, v{v}", "valu", rd=[("v", v)], wr=[("a", a)])
def swap32(a, b): return I(f"v_permlane32_swap_b32 v{a}, v{b}", "perm", rd=[("v", a), ("v", b)], wr=[("v", a), ("v", b)])
def swap16(a, b): return I(f"v_permlane16_swap_b32 v{a}, v{b}", "perm", rd=[("v", a), ("v", b)], wr=[("v", a), ("v", b)])
def mfma(d, a, b, c):
    ct = "0" if c is None else rt("v", c, 4)
    return I(f"v_mfma_f32_16x16x32_bf16 {rt('v', d, 4)}, {rt(a[0], a[1], 4)}, {rt(b[0], b[1], 4)}, {ct}", "mfma",
             rd=rng(a[0], a[1], 4) + rng(b[0], b[1], 4), wr=rng("v", d, 4), rdc=[] if c is None else rng("v", c, 4))

O0 = 128
def OT(s, qs, t): return O0 + s * 16 + qs * 8 + t * 4
def SB(par, qs, ks): return 96 + par * 16 + qs * 8 + ks * 4
def PB(par, qs): return 80 + par * 8 + qs * 4
def NM(qs): return 72 + qs * 4
def LA(qs): return 64 + qs * 4
E0 = 56
def VA(r, t): return 32 + r * 8 + t
def KA(r, s): return 20 + r * 4 + s
KVOFF = 16; WQOFF = 12; WOOFF = 8; XOFF = 6; WABASE = 5; STOFF = 4
TMP = 0
def QF(s, qs): return s * 8 + qs * 4
def XF(kt, qs): return 64 + kt * 8 + qs * 4
ONES = 176
RING0 = 192
def YT(cp, nt, qs): return (96 + nt * 8 + qs * 4) if cp == 0 else (O0 + (nt * 2 + qs) * 8 + 4)
S_X, S_K, S_V, S_WQ, S_WO, S_WS = 8, 12, 16, 20, 24, 28
S_WB = 32
S_SOFF = 33; S_SOFF2 = 34; S_SC = 35; S_MASK = 36; S_BIAS = 37
S_RET = 38
S_TWQ = 40; S_T128 = 48; S_TST = 56
S_STAMP = 64
BIAS = 8.0

class Cfg:
    ring = 14; lat = 7; nslots = 10
    kvflag = " nt"; wflag = ""; xflag = ""; stflag = " nt"; rdflag = " nt"
    early_kv = 6
    dma_space = 3
    stamps = False
    rot = True
    max_ahead = 10
    verbose = False
    npro = 12
    cpf_every = 2
    cpf_ahead = 3072
    cpf = True
    kv_every = 1

def f2u(x):
    import struct
    return struct.unpack("<I", struct.pack("<f", x))[0]

def build_main(cfg):
    MF = []; FR = []; VQ = []
    tiles = []
    marks = {}
    def new_tile(name, **kw):
        t = dict(name=name, n=len(tiles), **kw); tiles.append(t); return t
    def frag(tile, reads):
        f = dict(id=len(FR), tile=tile, reads=reads, first=len(MF), last=None, earliest=-1); FR.append(f); return f
    def A(f): return ("a", RING0 + (f["id"] % cfg.ring) * 4)
    def add_m(ins, f=None):
        ins.tag = f; MF.append(ins)
        if f is not None: f["last"] = len(MF) - 1
        return len(MF) - 1
    def tr_tile(tile, bsel, first):
        for T in range(16):
            f = frag(tile, [("tr", "V", T & 7, u * 8192 + (T >> 3) * 256, u) for u in range(2)])
            for qs in range(2):
                d = OT(T >> 1, qs, T & 1)
                i = add_m(mfma(d, A(f), bsel(qs), None if first else d), f)
                marks[(tile["name"], T, qs)] = i
    def qk_tile(j):
        tile = new_tile(f"K{j}", kind="K", idx=j); par = j & 1
        marks[("K", j, "first")] = len(MF)
        for s in range(8):
            for ks in range(2):
                f = frag(tile, [("b128", "K", s & 3, ks * 8192 + (s >> 2) * 256, 0)])
                for qs in range(2):
                    d = SB(par, qs, ks)
                    c = d if s else (None if j < 2 else NM(qs))
                    i = add_m(mfma(d, A(f), ("a", QF(s, qs)), c), f)
                    marks.setdefault(("Quse", s, qs), i)
        marks[("K", j, "last")] = len(MF) - 1
    def pv_tile(j):
        tile = new_tile(f"V{j}", kind="V", idx=j); par = j & 1
        marks[("V", j, "first")] = len(MF)
        for qs in range(2):
            marks[("L", j, qs)] = add_m(mfma(LA(qs), ("a", ONES), ("v", PB(par, qs)), None if j == 0 else LA(qs)))
        tr_tile(tile, lambda qs: ("v", PB(par, qs)), j == 0)
        marks[("V", j, "last")] = len(MF) - 1
    for i in range(14):
        t = new_tile(f"W{i}", kind="W", idx=i)
        tr_tile(t, lambda qs: ("a", XF(i, qs)), i == 0)
    marks["qproj_end"] = len(MF) - 1
    qk_tile(0); qk_tile(1)
    for j in range(16):
        pv_tile(j)
        if j + 2 < 16: qk_tile(j + 2)
    marks["attn_end"] = len(MF) - 1
    for c in range(7):
        marks[("Y", c, "first")] = len(MF)
        for half in range(2):
            tile = new_tile(f"O{c}{'ab'[half]}", kind="O", idx=c, half=half)
            for s4 in range(4):
                s = half * 4 + s4
                for nt in range(4):
                    f = frag(tile, [("tr", "K", nt, s4 * 4096 + u * 2048, u) for u in range(2)])
                    for qs in range(2):
                        d = YT(c & 1, nt, qs)
                        i = add_m(mfma(d, A(f), ("v", OT(s, qs, 0)), None if s == 0 else d), f)
                        marks.setdefault(("Ouse", s, qs), i)
                        marks[("Ydone", c, nt, qs)] = i
    NM_ = len(MF)
    RAW = 4
    def q(ins, earliest, deadline):
        ins.earliest = earliest; ins.deadline = deadline; VQ.append(ins); return ins
    for s in range(8):
        for qs in range(2):
            e = marks[("W13", 2 * s + 1, qs)] + RAW; dl = marks[("Quse", s, qs)] - 1
            b = OT(s, qs, 0)
            for r in range(8): q(valu("v_mul_f32", b + r, f"s{S_SC}", b + r), e, dl)
            for r in range(4): q(valu("v_cvt_pk_bf16_f32", b + r, b + 2 * r, b + 2 * r + 1), e, dl)
        for qs in range(2):
            e = marks[("W13", 2 * s + 1, qs)] + RAW; dl = marks[("Quse", s, qs)] - 1
            b = OT(s, qs, 0)
            q(swap32(b, b + 2), e, dl); q(swap32(b + 1, b + 3), e, dl)
        for qs in range(2):
            e = marks[("W13", 2 * s + 1, qs)] + RAW; dl = marks[("Quse", s, qs)] - 1
            b = OT(s, qs, 0)
            for r in range(4): q(accw(QF(s, qs) + r, b + r), e, dl)
    def rowmax(par, emit):
        for qs in range(2):
            b = SB(par, qs, 0); t = E0 + qs
            emit(valu("v_max3_f32", t, b, b + 1, b + 2));
        for k in (3, 5):
            for qs in range(2):
                b = SB(par, qs, 0); t = E0 + qs
                emit(valu("v_max3_f32", t, t, b + k, b + k + 1))
        for qs in range(2):
            b = SB(par, qs, 0); t = E0 + qs
            emit(valu("v_max_f32", t, t, b + 7))
        for sw in (swap32, swap16):
            for qs in range(2): emit(valu("v_mov_b32", E0 + 2 + qs, E0 + qs))
            for qs in range(2): emit(sw(E0 + qs, E0 + 2 + qs))
            for qs in range(2): emit(valu("v_max_f32", E0 + qs, E0 + qs, E0 + 2 + qs))
    def expcvt(par, emit, ebase=E0, ne=8):
        pend = None; k = 0
        for qs in range(2):
            for i in range(4):
                b = SB(par, qs, 0) + 2 * i
                e0 = ebase + (k % ne); e1 = ebase + ((k + 1) % ne); k += 2
                emit(trans("v_exp_f32", e0, b)); emit(trans("v_exp_f32", e1, b + 1))
                if pend: emit(pend)
                pend = valu("v_cvt_pk_bf16_f32", PB(par, qs) + i, e0, e1)
        emit(pend)
    stubs = []
    for j in range(16):
        par = j & 1
        e = marks[("K", j, "last")] + RAW; dl = marks[("V", j, "first")] - 1
        em = lambda ins: q(ins, e, dl)
        if j == 0:
            rowmax(0, em)
            for qs in range(2):
                for r in range(4): em(valu("v_sub_f32", NM(qs) + r, f"s{S_BIAS}", E0 + qs))
        if j < 2:
            for qs in range(2):
                for r in range(8): em(valu("v_add_f32", SB(par, qs, 0) + r, SB(par, qs, 0) + r, NM(qs)))
        expcvt(par, em)
        if j > 0:
            p = PB(par, 0)
            em(valu("v_or3_b32", TMP, p, p + 1, p + 2)); em(valu("v_or3_b32", TMP + 1, p + 3, p + 4, p + 5))
            em(valu("v_or3_b32", TMP, TMP, p + 6, p + 7))
            x = valu("v_bitop3_b32", TMP, TMP, TMP + 1, f"s{S_MASK}"); x.text += " bitop3:0xa8"; em(x)
            em(I(f"v_cmp_ne_u32 vcc, 0, v{TMP}", "valu", rd=[("v", TMP)]))
            br = I(f"s_cbranch_vccnz L_stub{j}", "br", after=[I(f"L_back{j}:", "label")])
            q(br, max(e, marks[("V", j - 1, "last")]), dl)
            stubs.append((j, par))
        if j == 15:
            for r in range(3):
                for nt in range(4):
                    q(valu("v_xor_b32", KA(r, nt), hex(nt * 32 | r << 16), WABASE), marks[("K", 15, "last")], dl)
            marks["wa_ready"] = dl
    for qs in range(2):
        q(trans("v_rcp_f32", E0 + qs, LA(qs)), marks[("L", 15, qs)] + RAW, marks[("Ouse", 0, 0)] - 1)
    for s in range(8):
        for qs in range(2):
            e = marks[("V15", 2 * s + 1, qs)] + RAW; dl = marks[("Ouse", s, qs)] - 1
            b = OT(s, qs, 0)
            for r in range(8): q(valu("v_mul_f32", b + r, b + r, E0 + qs), e, dl)
            for r in range(4): q(valu("v_cvt_pk_bf16_f32", b + r, b + 2 * r, b + 2 * r + 1), e, dl)
    k = 0
    for c in range(7):
        dl = marks[("Y", c + 2, "first")] - 1 if c + 2 < 7 else NM_ - 1
        pend = None
        for np_ in range(2):
            for qs in range(2):
                e = min(marks[("Ydone", c, 2 * np_ + 1, qs)] + RAW, NM_ - 1)
                st = 72 + (k % 6) * 4; k += 1
                for t in range(2):
                    y = YT(c & 1, 2 * np_ + t, qs)
                    q(valu("v_cvt_pk_bf16_f32", st + 2 * t, y, y + 1), e, dl)
                    q(valu("v_cvt_pk_bf16_f32", st + 2 * t + 1, y + 2, y + 3), e, dl)
                j = np_ * 2 + qs
                q(I(f"buffer_store_dwordx4 {rt('v', st, 4)}, v{STOFF}, s[{S_WS}:{S_WS+3}], s{S_SOFF2} offen{cfg.stflag}", "store",
                    rd=rng("v", st, 4) + [("v", STOFF)], pre=[salu(f"s_add_u32 s{S_SOFF2}, s{S_TST + c}, {j * 16384}")]), e, dl)
    m = 1 << 30
    for ins in reversed(VQ):
        m = min(m, ins.deadline); ins.deadline = m
    for f in FR:
        if f["tile"]["kind"] == "O": f["earliest"] = marks["wa_ready"] + 1
    byname = {t["name"]: t for t in tiles}
    order = [t["name"] for t in tiles]
    if cfg.early_kv:
        kv = [n for n in order if n[0] in "KV"][:cfg.early_kv]
        rest = [n for n in order if n not in kv]
        nw = cfg.nslots - cfg.early_kv
        order = rest[:nw]; rest = rest[nw:]
        while kv:
            order.append(kv.pop(0))
            for _ in range(cfg.kv_every):
                order.append(rest.pop(0))
        order += rest
    if getattr(cfg, "order", None): order = cfg.order
    def dma_ops(t, slot):
        k = t["kind"]; ops = []
        if k == "W":
            i = t["idx"]
            if i % 2 == 0:
                for kk in range(2):
                    for qs in range(2):
                        pass
                for qs in range(2):
                    for kk in range(2):
                        a = XF(i + kk, qs)
                        ops.append(I(f"buffer_load_dwordx4 {rt('a', a, 4)}, v{XOFF + qs}, s[{S_X}:{S_X+3}], s{S_T128 + i // 2} offen offset:{kk * 64}{cfg.xflag}",
                                     "vmem", rd=[("v", XOFF + qs)], wr=rng("a", a, 4), tag=("x", i + kk)))
            pre = [salu(f"s_add_u32 s{S_SOFF}, s{S_TWQ + i // 2}, {(i & 1) * 262144}")]
            srd, vo, fl = S_WQ, WQOFF, cfg.wflag
        elif k in "KV":
            pre = [salu(f"s_mov_b32 s{S_SOFF}, {t['idx'] * 16384}")]
            srd, vo, fl = (S_K if k == "K" else S_V), KVOFF, cfg.kvflag
        else:
            pre = [salu(f"s_add_u32 s{S_SOFF}, s{S_T128 + t['idx']}, {t['half'] * 114688}")]
            srd, vo, fl = S_WO, WOOFF, cfg.wflag
        pre.insert(0, I(f"s_add_u32 m0, s{S_WB}, {slot * 16384}", "salu", tag="m0"))
        for p in range(4):
            ops.append(I(f"buffer_load_dwordx4 v{vo + p}, s[{srd}:{srd+3}], s{S_SOFF} offen offset:{p * 1024}{fl} lds", "dma",
                         rd=[("v", vo + p)], pre=pre if p == 0 else [], tag=("tile", t["n"])))
        return ops

    out = []
    ds_list = []
    ds_cov = [0]
    vm_list = []
    vm_cov = [0]
    free = list(range(cfg.nslots)); MQ = []; oi = [0]; freed_upto = [0]
    bar_done = [-1]
    bar_state = [0]
    last_dma = [-100]
    stats = dict(over=0, dsds=0, waits=0)
    touch = []; touched = cfg.touched = []
    def refill():
        while free and oi[0] < len(order):
            t = byname[order[oi[0]]]
            t["slot"] = free.pop(0); MQ.extend(dma_ops(t, t["slot"])); oi[0] += 1
    def emit(ins):
        out.append(ins)
        if ins.kind in ("vmem", "dma", "store"): vm_list.append(ins.tag)
        for a in ins.after: out.append(a)
    def emit_vm(ins):
        for p in ins.pre: emit(p)
        ins.pre = []; emit(ins)
    DS = [(f, r) for f in FR for r in f["reads"]]
    di = [0]; vi = [0]
    def ds_ins(f, r):
        kind, at, idx, imm, u = r
        slot = f["tile"]["slot"]; reg = (VA if at == "V" else KA)(slot >> 2, idx); off = (slot & 3) * 16384 + imm
        a = A(f)[1]
        if kind == "tr": return I(f"ds_read_b64_tr_b16 {rt('a', a + 2 * u, 2)}, v{reg} offset:{off}", "ds", rd=[("v", reg)], wr=rng("a", a + 2 * u, 2))
        return I(f"ds_read_b128 {rt('a', a, 4)}, v{reg} offset:{off}", "ds", rd=[("v", reg)], wr=rng("a", a, 4))
    def ring_ok(f, g):
        if f["earliest"] > g: return False
        return f["id"] < cfg.ring or FR[f["id"] - cfg.ring]["last"] <= g
    def ds_ready(g):
        if di[0] >= len(DS): return False
        f, r = DS[di[0]]
        return ring_ok(f, g) and f["tile"]["n"] <= bar_done[0]
    def emit_ds(g):
        f, r = DS[di[0]]; emit(ds_ins(f, r)); ds_list.append(g); f["lastrd"] = len(ds_list) - 1; f["tile"]["lastrd"] = len(ds_list) - 1; di[0] += 1
    def vm_wait(t):
        while any(x.tag == ("tile", t["n"]) for x in MQ):
            emit_vm(MQ.pop(0)); stats["over"] += 1
        idx = max(i for i, x in enumerate(vm_list) if x == ("tile", t["n"]))
        if idx < vm_cov[0]: return
        n = min(len(vm_list) - 1 - idx, 63)
        emit(I(f"s_waitcnt vmcnt({n})", "wait")); vm_cov[0] = len(vm_list) - n
    def barrier(t):
        emit(I("s_barrier", "bar")); bar_done[0] = t["n"]
        if cfg.cpf and t["n"] % cfg.cpf_every == 0 and t["n"] > 0: touch.append(t["n"])
        while freed_upto[0] < len(tiles):
            o = tiles[freed_upto[0]]
            if o["n"] < t["n"] and "lastrd" in o and o["lastrd"] < ds_cov[0] and not any(ff["tile"] is o for ff, _ in DS[di[0]:di[0] + 40]):
                free.append(o["slot"]); freed_upto[0] += 1
            else: break
        refill()
    def next_bar_tile(g, look=0):
        if di[0] >= len(DS): return None
        f, r = DS[min(di[0] + look, len(DS) - 1)]
        if f["tile"]["n"] > bar_done[0] and ring_ok(f, g + 2): return tiles[bar_done[0] + 1]
        return None
    def lgkm_wait(f, g):
        need = f["lastrd"] + 1
        if need <= ds_cov[0]: return False
        cov = need
        while cov < len(ds_list) and ds_list[cov] <= g - cfg.lat: cov += 1
        cov = max(cov, len(ds_list) - 15)
        emit(I(f"s_waitcnt lgkmcnt({len(ds_list) - cov})", "wait")); ds_cov[0] = cov; stats["waits"] += 1
        return True
    def stamp(k):
        if cfg.stamps: emit(I(f"s_memrealtime s[{S_STAMP + 2*k}:{S_STAMP + 2*k + 1}]", "smem"))
    stamp_at = {}
    if cfg.stamps:
        pts = [0, marks["qproj_end"], marks[("V", 0, "first")], marks[("V", 4, "first")], marks[("V", 8, "first")], marks[("V", 12, "first")], marks["attn_end"],
               marks[("Y", 1, "first")], marks[("Y", 4, "first")], NM_ - 1]
        for k, p in enumerate(pts): stamp_at[p] = k + 1
    refill()
    for _ in range(cfg.npro): emit_vm(MQ.pop(0))
    pro_end = len(out)
    for g in range(-1, NM_):
        if g >= 0: emit(MF[g])
        if g in stamp_at:
            stamp(stamp_at[g]); emit(I("s_waitcnt lgkmcnt(0)", "wait")); ds_cov[0] = len(ds_list)
        nxt = MF[g + 1] if g + 1 < NM_ else None
        nf = nxt.tag if nxt is not None else None
        if nf is not None and nf["first"] == g + 1:
            if "lastrd" not in nf or any(ff is nf for ff, _ in DS[di[0]:di[0] + 2]):
                while any(ff is nf for ff, _ in DS[di[0]:di[0] + 4]) or (g == -1 and ds_ready(g) and len(ds_list) < 12):
                    f, r = DS[di[0]]
                    if f["tile"]["n"] > bar_done[0]:
                        t = tiles[bar_done[0] + 1]
                        if bar_state[0] == 0: vm_wait(t)
                        bar_state[0] = 0; barrier(t)
                    emit_ds(g); stats["over"] += 1
        sc = 0
        if nf is not None and nf["first"] == g + 1:
            if lgkm_wait(nf, g): sc += 1
        if sc == 0:
            t = next_bar_tile(g, 2)
            if t is not None and bar_state[0] == 0 and not any(x.tag == ("tile", t["n"]) for x in MQ):
                vm_wait(t); bar_state[0] = 1; sc += 1
            elif bar_state[0] == 1 and next_bar_tile(g, 0) is not None:
                barrier(tiles[bar_done[0] + 1]); bar_state[0] = 0; sc += 1
        if sc == 0 and touch:
            n = touch.pop(0)
            emit(I(f"L_t{n}:", "label")); emit(I(f"s_load_dword s98, s[96:97], TOUCH{n}", "smem")); sc += 1
            touched.append(n)
        if sc == 0 and MQ and MQ[0].pre:
            emit(MQ[0].pre.pop(0)); sc += 1
        if sc == 0 and vi[0] < len(VQ) and VQ[vi[0]].pre and VQ[vi[0]].earliest <= g:
            emit(VQ[vi[0]].pre.pop(0)); sc += 1
        if sc == 0 and vi[0] < len(VQ) and VQ[vi[0]].kind == "br" and VQ[vi[0]].earliest <= g:
            emit(VQ[vi[0]]); vi[0] += 1; sc += 1
        def slack(k):
            if di[0] + k >= len(DS): return 1 << 20
            return DS[di[0] + k][0]["first"] - 1 - cfg.lat - g
        def vq():
            if vi[0] < len(VQ) and VQ[vi[0]].earliest <= g: return VQ[vi[0]]
            return None
        slots = 2
        v = vq()
        dma_ok = MQ and not MQ[0].pre and g - last_dma[0] >= cfg.dma_space and not (out[-1].tag == "m0")
        urgent = ds_ready(g) and slack(0) <= 0
        if not urgent and dma_ok:
            emit_vm(MQ.pop(0)); last_dma[0] = g; slots = 0
        elif not urgent and v is not None and v.kind in ("trans", "store") and not v.pre:
            emit(v); vi[0] += 1; slots = 0
        else:
            if ds_ready(g): emit_ds(g); slots -= 1
            v = vq()
            plain = v is not None and v.kind in ("valu", "perm")
            if slots == 1 and ds_ready(g) and (slack(0) <= 0 or not plain):
                emit_ds(g); slots -= 1; stats["dsds"] += 1
            while slots > 0:
                v = vq()
                if v is not None and v.kind in ("valu", "perm"):
                    emit(v); vi[0] += 1; slots -= 1
                else: break
        while vi[0] < len(VQ) and VQ[vi[0]].deadline <= g:
            emit_vm(VQ[vi[0]]); vi[0] += 1; stats["over"] += 1
    assert di[0] == len(DS) and vi[0] == len(VQ) and not MQ and oi[0] == len(order)
    if cfg.verbose: print("sched stats", stats, "mfma", NM_, "ins", len(out), file=sys.stderr)

    rare = []
    for j, par in stubs:
        rare.append(I(f"L_stub{j}:", "label")); rare.append(I(f"s_call_b64 s[{S_RET}:{S_RET+1}], L_rescale{par}", "br")); rare.append(I(f"s_branch L_back{j}", "br"))
    for par in range(2):
        R = []
        R.append(I(f"L_rescale{par}:", "label")); R.append(I("s_nop 15", "nop"))
        rowmax(par, R.append)
        for qs in range(2):
            R.append(valu("v_sub_f32", E0 + qs, E0 + qs, f"s{S_BIAS}"))
            R[-1].text = f"v_subrev_f32 v{E0+qs}, s{S_BIAS}, v{E0+qs}"
        for qs in range(2): R.append(valu("v_max_f32", E0 + qs, "0", E0 + qs))
        for qs in range(2):
            x = trans("v_exp_f32", E0 + 2 + qs, ("-", E0 + qs)); R.append(x)
        for qs in range(2):
            for r in range(4): R.append(valu("v_sub_f32", NM(qs) + r, NM(qs) + r, E0 + qs))
            for pp in range(2):
                for r in range(8): R.append(valu("v_sub_f32", SB(pp, qs, 0) + r, SB(pp, qs, 0) + r, E0 + qs))
            for r in range(4): R.append(valu("v_mul_f32", LA(qs) + r, LA(qs) + r, E0 + 2 + qs))
            for s in range(8):
                for r in range(8): R.append(valu("v_mul_f32", OT(s, qs, 0) + r, OT(s, qs, 0) + r, E0 + 2 + qs))
        expcvt(par, R.append, ebase=E0 + 4, ne=4)
        R.append(I("s_nop 3", "nop")); R.append(I(f"s_setpc_b64 s[{S_RET}:{S_RET+1}]", "br"))
        rare += fix_hazards(R)
    return out, pro_end, rare

def fix_hazards(seq, verbose=False):
    res = []; pos = 0
    lw = {}
    lc = {}
    ls = {}
    m0w = -100; nn = 0
    for ins in seq:
        if ins.kind == "label": res.append(ins); continue
        need = 0
        def req(p, n):
            nonlocal need
            need = max(need, n - (pos - p - 1))
        k = ins.kind
        isv = k in ("valu", "trans", "perm")
        for r in ins.rd + ins.rdc:
            if r in lw:
                p, wk = lw[r]
                if k == "mfma":
                    if wk in ("valu", "trans", "perm"): req(p, 2)
                    elif wk == "mfma":
                        if r in ins.rd: req(p, 8)
                        elif not (ins.rdc == ins.wr and lw[r][0] == lw[ins.wr[0]][0]): req(p, 6)
                elif wk == "mfma": req(p, 8)
                elif wk == "trans" and k in ("valu", "perm"): req(p, 1)
                if k == "perm" and wk in ("valu", "trans", "perm"): req(p, 2)
        for r in ins.wr:
            if k != "mfma" and r in lw and lw[r][1] == "mfma": req(lw[r][0], 8)
            if isv and r in lc: req(lc[r], 3)
            if isv and r in ls: req(ls[r], 2)
        if k == "dma": req(m0w, 1)
        if need > 0:
            res.append(I(f"s_nop {need - 1}", "nop")); pos += need; nn += need
        res.append(ins)
        for r in ins.wr: lw[r] = (pos, k)
        if k == "mfma":
            for r in ins.rdc: lc[r] = pos
        if k == "store":
            for r in ins.rd: ls[r] = pos
        if ins.tag == "m0": m0w = pos
        if k == "nop": pos += int(ins.text.split()[1]) + 1
        else: pos += 1
    if verbose: print("hazard nops inserted (states):", nn, file=sys.stderr)
    return res

def srd(P, d, lo, off, n):
    P(f"s_add_u32 s{d}, s{lo}, {off}"); P(f"s_addc_u32 s{d+1}, s{lo+1}, 0")
    P(f"s_mov_b32 s{d+2}, {n}"); P(f"s_mov_b32 s{d+3}, 0x20000")

def kd(P, name, vg, acc):
    P(f".amdhsa_kernel {name}")
    for l in [f"next_free_vgpr {vg}", "next_free_sgpr 102", f"accum_offset {acc}", "group_segment_fixed_size 0", "kernarg_size 104",
              "user_sgpr_count 2", "user_sgpr_kernarg_segment_ptr 1", "system_sgpr_workgroup_id_x 1"]:
        P("  .amdhsa_" + l)
    P(".end_amdhsa_kernel")

PART_BYTES = 16 * 7 * 262144

def gen(cfg):
    L = []; P = L.append
    hdr = open("cdna_kernels/" + NAME + ".s.ref").read().split("\n") if False else []
    P("; @launch kernel=attn_kernel grid=(256,1,1) block=(256,1,1) lds=163840")
    P("; @launch kernel=reduce_kernel grid=(448,1,1) block=(256,1,1) lds=0")
    P('.amdgcn_target "amdgcn-amd-amdhsa--gfx950"')
    P(".text"); P(".globl attn_kernel"); P(".p2align 8"); P(".type attn_kernel,@function"); P("attn_kernel:")
    P("s_cmp_ge_u32 s2, 256"); P("s_cbranch_scc1 L_end")
    if cfg.stamps: P(f"s_memrealtime s[{S_STAMP}:{S_STAMP+1}]")
    P("s_lshr_b32 s3, s2, 7")
    P("s_mul_i32 s4, s3, 40")
    P("s_add_u32 s4, s0, s4"); P("s_addc_u32 s5, s1, 0")
    P("s_load_dwordx8 s[40:47], s[4:5], 0")
    P("s_load_dwordx2 s[48:49], s[4:5], 32")
    P("s_load_dwordx2 s[50:51], s[0:1], 96")
    P("s_and_b32 s52, s2, 7")
    P("s_bfe_u32 s53, s2, 0x30003")
    P("s_bfe_u32 s54, s2, 0x10006")
    P("s_lshl_b32 s55, s52, 1"); P("s_add_u32 s55, s55, s54")
    P("s_lshl_b32 s56, s53, 3"); P("s_add_u32 s56, s56, s52")
    P("s_lshl_b32 s57, s53, 4"); P("s_add_u32 s57, s57, s55")
    P("s_cmp_eq_u32 s3, 0"); P("s_cselect_b32 s56, s56, s57"); P("s_lshl_b32 s56, s56, 18")
    P("s_mul_i32 s57, s53, 114688")
    P("s_lshl_b32 s58, s55, 9")
    P("s_mul_i32 s59, s55, 229376")
    P("s_lshl_b32 s60, s3, 3"); P("s_add_u32 s60, s60, s53"); P(f"s_mul_i32 s60, s60, {7*262144}")
    P("s_lshl_b32 s61, s55, 10"); P("s_add_u32 s60, s60, s61")
    if cfg.rot:
        P("s_lshl_b32 s62, s54, 2"); P("s_add_u32 s62, s62, s53"); P("s_cmp_ge_u32 s62, 7"); P("s_cselect_b32 s63, 7, 0"); P("s_sub_u32 s62, s62, s63")
    else:
        P("s_mov_b32 s62, 0")
    P("v_lshrrev_b32 v1, 6, v0")
    P("v_and_b32 v0, 63, v0")
    P("v_readfirstlane_b32 s6, v1")
    P("v_lshrrev_b32 v2, 5, v0")
    P("v_and_b32 v3, 31, v0")
    P(f"s_lshl_b32 s{S_WB}, s6, 12")
    P("s_and_b32 s7, s6, 1"); P("s_lshl_b32 s7, s7, 4"); P("s_lshr_b32 s63, s6, 1"); P("s_lshl_b32 s63, s63, 2"); P("s_add_u32 s7, s7, s63")
    P("v_add_u32 v56, s7, v2"); P("v_lshlrev_b32 v56, 13, v56")
    P("v_lshlrev_b32 v57, 1, v2"); P("v_xor_b32 v57, v57, v3")
    P("v_lshlrev_b32 v58, 9, v2"); P(f"v_add_u32 v58, s{S_WB}, v58")
    for p in range(4):
        P(f"v_xor_b32 v59, {p * 4}, v57")
        P(f"v_lshl_add_u32 v{KVOFF + p}, v59, 4, v58")
        P(f"v_lshl_add_u32 v{WQOFF + p}, v59, 4, v56")
        kk = [0, 2, 8, 10][p]
        if p: P(f"v_add_u32 v{WQOFF + p}, {kk * 8192 - 1024 * p}, v{WQOFF + p}")
    P("v_and_b32 v60, 15, v0"); P("v_lshrrev_b32 v61, 4, v0")
    P("s_lshl_b32 s7, s6, 5"); P("v_add_u32 v62, s7, v60"); P("v_mul_u32_u24 v62, 896, v62")
    P(f"v_lshl_add_u32 v{XOFF}, v61, 4, v62"); P(f"v_add_u32 v{XOFF + 1}, {16 * 896}, v{XOFF}")
    P("s_waitcnt lgkmcnt(0)")
    srd(P, S_X, 40, "s57", 114688)
    srd(P, S_WQ, 46, "s58", 448 * 8192); P(f"s_sub_u32 s{S_WQ+2}, s{S_WQ+2}, s58")
    srd(P, S_K, 42, "s56", 262144)
    srd(P, S_V, 44, "s56", 262144)
    srd(P, S_WO, 48, "s59", 229376)
    srd(P, S_WS, 50, "s60", PART_BYTES); P(f"s_sub_u32 s{S_WS+2}, s{S_WS+2}, s60")
    if cfg.stamps: P("s_mov_b32 s4, s50"); P("s_mov_b32 s5, s51")
    P("s_mov_b32 s7, s62")
    for u in range(7):
        P(f"s_lshl_b32 s{S_TWQ + u}, s7, 19"); P(f"s_lshl_b32 s{S_T128 + u}, s7, 7"); P(f"s_lshl_b32 s{S_TST + u}, s7, 18")
        if u < 6: P("s_add_u32 s7, s7, 1"); P("s_cmp_eq_u32 s7, 7"); P("s_cselect_b32 s7, 0, s7")
    body, pro_end, rare = build_main(cfg)
    body = body
    late = []
    A = late.append
    if cfg.cpf:
        A("s_getpc_b64 s[96:97]"); A("L_pc:")
        A("s_lshr_b32 s98, s2, 3"); A("s_lshl_b32 s98, s98, 2"); A("s_add_u32 s98, s98, s6"); A("s_and_b32 s98, s98, 31"); A("s_lshl_b32 s98, s98, 7")
        A("s_add_u32 s96, s96, s98"); A("s_addc_u32 s97, s97, 0")
        for k in range(2): A(f"s_load_dword s98, s[96:97], {k * 4096}")
    A(f"s_mov_b32 s{S_SC}, {hex(f2u(1.4426950408889634 / 16.0))}")
    A(f"s_mov_b32 s{S_MASK}, 0x40004000"); A(f"s_mov_b32 s{S_BIAS}, {hex(f2u(-BIAS))}")
    A("v_lshrrev_b32 v56, 2, v0")
    A("v_and_b32 v57, 3, v0")
    A("v_and_b32 v58, 1, v57"); A("v_lshrrev_b32 v59, 1, v57"); A("v_lshl_or_b32 v57, v58, 1, v59")
    A("v_and_b32 v58, 7, v56"); A("v_lshlrev_b32 v58, 5, v58")
    A("v_lshl_or_b32 v58, v56, 9, v58"); A("v_lshl_or_b32 v58, v57, 3, v58")
    for r in range(3):
        for t in range(8): A(f"v_xor_b32 v{VA(r, t)}, {hex(t * 32 | r << 16)}, v58")
    A("v_bfe_u32 v58, v56, 1, 2"); A("v_lshlrev_b32 v58, 5, v58"); A("v_lshl_or_b32 v58, v56, 7, v58"); A(f"v_lshl_or_b32 v{WABASE}, v57, 3, v58")
    A("v_and_b32 v58, 7, v60"); A("v_lshlrev_b32 v58, 1, v58"); A("v_xor_b32 v58, v58, v61"); A("v_lshlrev_b32 v58, 4, v58"); A("v_lshl_or_b32 v58, v60, 9, v58")
    for r in range(3):
        for s in range(4): A(f"v_xor_b32 v{KA(r, s)}, {hex(s * 64 | r << 16)}, v58")
    A("v_lshrrev_b32 v56, 3, v0"); A("v_and_b32 v57, 3, v56"); A("v_lshrrev_b32 v58, 2, v56"); A("v_lshl_or_b32 v57, v58, 3, v57")
    A("s_lshl_b32 s7, s6, 5"); A("v_add_u32 v57, s7, v57"); A("v_mul_u32_u24 v57, 896, v57")
    A("v_and_b32 v58, 6, v56"); A("v_and_b32 v59, 7, v0"); A("v_xor_b32 v58, v58, v59"); A(f"v_lshl_add_u32 v{WOOFF}, v58, 4, v57")
    for p in range(1, 4):
        A(f"v_add_u32 v{WOOFF + p}, {(16 * (p >> 1) + 4 * (p & 1)) * 896 - 1024 * p}, v{WOOFF}")
    A("s_lshl_b32 s7, s6, 16"); A(f"v_lshlrev_b32 v{STOFF}, 4, v0"); A(f"v_add_u32 v{STOFF}, s7, v{STOFF}")
    A("v_mov_b32 v56, 0x3f803f80")
    for r in range(4): A(f"v_accvgpr_write_b32 a{ONES + r}, v56")
    seq = body[:pro_end] + [I(t, "label" if t.endswith(":") else "salu") for t in late] + body[pro_end:]
    seq = fix_hazards(seq, cfg.verbose)
    for ins in seq: P(ins.text)
    if cfg.stamps:
        P("s_waitcnt vmcnt(0)"); P(f"s_memrealtime s[{S_STAMP + 22}:{S_STAMP + 23}]"); P("s_waitcnt lgkmcnt(0)")
        P(f"s_add_u32 s8, s4, {64 << 20}"); P("s_addc_u32 s9, s5, 0"); P("s_mov_b32 s10, 0x100000"); P("s_mov_b32 s11, 0x20000")
        P("s_lshl_b32 s7, s2, 2"); P("s_add_u32 s7, s7, s6"); P("s_lshl_b32 s7, s7, 6"); P("v_mov_b32 v1, s7")
        P("s_mov_b64 exec, 1")
        for k in range(12):
            P(f"v_mov_b32 v2, s{S_STAMP + 2*k}"); P(f"buffer_store_dword v2, v1, s[8:11], 0 offen offset:{4*k}"); P("s_nop 1")
    P("L_end:"); P("s_endpgm")
    for ins in rare: P(ins.text)
    P(".p2align 8"); P(".globl reduce_kernel"); P(".type reduce_kernel,@function"); P("reduce_kernel:")
    P("s_cmp_ge_u32 s2, 448"); P("s_cbranch_scc1 R_end")
    P("s_load_dwordx2 s[4:5], s[0:1], 96"); P("s_load_dwordx2 s[6:7], s[0:1], 80")
    P("v_lshrrev_b32 v1, 6, v0"); P("v_and_b32 v0, 63, v0"); P("v_readfirstlane_b32 s16, v1")
    P("v_lshlrev_b32 v2, 4, v0")
    P("s_lshl_b32 s17, s2, 2"); P("s_add_u32 s17, s17, s16"); P("s_lshl_b32 s17, s17, 14")
    P("s_lshr_b32 s18, s2, 2")
    P("s_mul_i32 s19, s18, 9363"); P("s_lshr_b32 s19, s19, 16")
    P("s_mul_i32 s20, s19, 7"); P("s_sub_u32 s20, s18, s20")
    P("s_and_b32 s21, s2, 3")
    P("s_waitcnt lgkmcnt(0)")
    srd(P, 8, 4, "s17", 16384)
    srd(P, 12, 6, 0, 8 * 128 * 896 * 2)
    for h in range(16):
        if h % 4 == 0: P(f"s_mov_b32 s22, {h * 1024}")
        P(f"buffer_load_dwordx4 v[{16 + h*4}:{16 + h*4 + 3}], v2, s[8:11], s22 offen offset:{(h % 4) * 1024}{cfg.rdflag}")
    P("s_and_b32 s23, s19, 7"); P("s_lshl_b32 s23, s23, 7"); P("s_lshl_b32 s24, s21, 5"); P("s_add_u32 s23, s23, s24")
    P("s_and_b32 s24, s16, 1"); P("s_lshl_b32 s24, s24, 4"); P("s_add_u32 s23, s23, s24")
    P("s_lshr_b32 s24, s19, 3"); P("s_mul_i32 s24, s24, 896"); P("s_lshl_b32 s25, s20, 7"); P("s_add_u32 s24, s24, s25")
    P("s_lshr_b32 s25, s16, 1"); P("s_lshl_b32 s25, s25, 6"); P("s_add_u32 s24, s24, s25")
    P("v_and_b32 v3, 15, v0"); P("v_add_u32 v3, s23, v3"); P("v_mul_u32_u24 v3, 1792, v3")
    P("v_lshrrev_b32 v4, 4, v0"); P("v_lshl_add_u32 v3, v4, 4, v3")
    for h in range(16):
        P(f"s_waitcnt vmcnt({15 - h})")
        for r in range(4):
            v = 16 + h * 4 + r
            if h == 0:
                P(f"v_lshlrev_b32 v{8 + 2*r}, 16, v{v}"); P(f"v_and_b32 v{9 + 2*r}, 0xffff0000, v{v}")
            else:
                P(f"v_lshlrev_b32 v5, 16, v{v}"); P(f"v_and_b32 v{v}, 0xffff0000, v{v}")
                P(f"v_add_f32 v{8 + 2*r}, v{8 + 2*r}, v5"); P(f"v_add_f32 v{9 + 2*r}, v{9 + 2*r}, v{v}")
    for r in range(4): P(f"v_cvt_pk_bf16_f32 v{4 + r}, v{8 + 2*r}, v{9 + 2*r}")
    P("s_nop 1"); P("v_permlane32_swap_b32 v4, v6"); P("v_permlane32_swap_b32 v5, v7")
    P("buffer_store_dwordx4 v[4:7], v3, s[12:15], s24 offen")
    P("R_end:"); P("s_endpgm"); P("L_text_end:")
    P('.section .rodata,"a"'); P(".p2align 6")
    kd(P, "attn_kernel", 512, 256)
    P(".p2align 6")
    kd(P, "reduce_kernel", 80, 80)
    return "\n".join(L) + "\n"

if __name__ == "__main__":
    cfg = Cfg(); cfg.verbose = True
    outp = sys.argv[1]
    for kv in sys.argv[2:]:
        k, v = kv.split("=", 1)
        setattr(cfg, k, eval(v))
    txt = gen(cfg)
    if cfg.cpf:
        import subprocess, re, tempfile, os
        tmp = re.sub(r"TOUCH\d+", "0", txt)
        open("_p1.s", "w").write(tmp)
        subprocess.check_call(["clang", "-x", "assembler", "-target", "amdgcn-amd-amdhsa", "-mcpu=gfx950", "-c", "_p1.s", "-o", "_p1.o"])
        sy = subprocess.check_output(["llvm-objdump", "-t", "_p1.o"]).decode()
        addr = {l.split()[-1]: int(l.split()[0], 16) for l in sy.splitlines() if " L_" in l}
        for n in cfg.touched:
            off = min(addr[f"L_t{n}"] - addr["L_pc"] + cfg.cpf_ahead, addr["L_text_end"] - addr["L_pc"] - 4096) & ~3
            txt = re.sub(rf"TOUCH{n}\b", str(off), txt)
    open(outp, "w").write(txt)
```

```python
import sys, argparse
NAME = "concat_heads__gqa_block_cached__mha_block_cached__near_ridge"

def rng(t, n, c=1): return [(t, n + i) for i in range(c)]
def rt(t, n, c=1): return f"{t}{n}" if c == 1 else f"{t}[{n}:{n+c-1}]"

class I:
    __slots__ = ("text", "kind", "rd", "wr", "rdc", "earliest", "deadline", "pre", "tag", "after")
    def __init__(s, text, kind, rd=(), wr=(), rdc=(), earliest=-1, deadline=1 << 30, pre=(), tag=None, after=()):
        s.text = text; s.kind = kind; s.rd = list(rd); s.wr = list(wr); s.rdc = list(rdc)
        s.earliest = earliest; s.deadline = deadline; s.pre = list(pre); s.tag = tag; s.after = list(after)

def salu(text): return I(text, "salu")
def valu(op, d, *srcs, kind="valu"):
    rd = []; ts = []
    for x in srcs:
        if isinstance(x, int): rd.append(("v", x)); ts.append(f"v{x}")
        elif isinstance(x, tuple): rd.append(("v", x[1])); ts.append(f"{x[0]}v{x[1]}")
        else: ts.append(x)
    return I(f"{op} v{d}, " + ", ".join(ts), kind, rd=rd, wr=[("v", d)])
def trans(op, d, s): return valu(op, d, s, kind="trans")
def accw(a, v): return I(f"v_accvgpr_write_b32 a{a}, v{v}", "valu", rd=[("v", v)], wr=[("a", a)])
def swap32(a, b): return I(f"v_permlane32_swap_b32 v{a}, v{b}", "perm", rd=[("v", a), ("v", b)], wr=[("v", a), ("v", b)])
def swap16(a, b): return I(f"v_permlane16_swap_b32 v{a}, v{b}", "perm", rd=[("v", a), ("v", b)], wr=[("v", a), ("v", b)])
def mfma(d, a, b, c):
    ct = "0" if c is None else rt("v", c, 4)
    return I(f"v_mfma_f32_16x16x32_bf16 {rt('v', d, 4)}, {rt(a[0], a[1], 4)}, {rt(b[0], b[1], 4)}, {ct}", "mfma",
             rd=rng(a[0], a[1], 4) + rng(b[0], b[1], 4), wr=rng("v", d, 4), rdc=[] if c is None else rng("v", c, 4))

O0 = 128
def OT(s, qs, t): return O0 + s * 16 + qs * 8 + t * 4
def SB(par, qs, ks): return 96 + par * 16 + qs * 8 + ks * 4
def PB(par, qs): return 80 + par * 8 + qs * 4
def NM(qs): return 72 + qs * 4
def LA(qs): return 64 + qs * 4
E0 = 56
def VA(r, t): return 32 + r * 8 + t
def KA(r, s): return 20 + r * 4 + s
KVOFF = 16; WQOFF = 12; WOOFF = 8; XOFF = 80; WABASE = 5; STOFF = 4
def XA(r, kk): return 84 + r * 2 + kk
TMP = 0
def QF(s, qs): return s * 8 + qs * 4
def XF(kt, qs): return 64 + kt * 8 + qs * 4
ONES = 176
RING0 = 192
def YT(cp, nt, qs): return (96 + nt * 8 + qs * 4) if cp == 0 else (O0 + (nt * 2 + qs) * 8 + 4)
S_X, S_K, S_V, S_WQ, S_WO, S_WS = 8, 12, 16, 20, 24, 28
S_WB = 32
S_SOFF = 33; S_SOFF2 = 34; S_SC = 35; S_MASK = 36; S_BIAS = 37
S_RET = 38
S_TWQ = 40; S_T128 = 48; S_TWO = 56
S_SPIN = 47; S_PO = 55
S_DBG = 64; S_OUT = 68; S_PM = 72
S_STT = 82; S_STAMP = 84
NONCE = 6; RDOFF = 12; FLOFF = 13; PLOFF = 14; OUTOFF = 15; POLL = 2
STASH = 180; ASEL = 184
def RD(c, i): return (c * 4 + i) * 4
def RA(c): return O0 + (8 + c) * 8 + 4
FLAG0 = 7 * 262144; GR = FLAG0 + 4096; OOR = 0x40000000
BIAS = 8.0

class Cfg:
    ring = 14; lat = 7; nslots = 10
    kvflag = " nt"; wflag = ""; xflag = ""; stflag = " sc1"; rdflag = " sc1"
    early = []
    dma_space = 3
    stamps = False
    rot = True
    max_ahead = 10
    verbose = False
    npro = 12
    map4 = False
    clk = "s_memrealtime"
    stampset = ""
    nox = False
    kv_hold = 0
    cpf_every = 2
    cpf_ahead = 3072
    cpf = True
    flag_lag = 72
    kvf = staticmethod(lambda k, j: " nt")
    polls = []

def f2u(x):
    import struct
    return struct.unpack("<I", struct.pack("<f", x))[0]

def build_main(cfg):
    MF = []; FR = []; VQ = []; XFR = []; spins = []; flagged = []; loaded = []
    tiles = []
    marks = {}
    def new_tile(name, **kw):
        t = dict(name=name, n=len(tiles), **kw); tiles.append(t); return t
    def frag(tile, reads):
        f = dict(id=len(FR), tile=tile, reads=reads, first=len(MF), last=None, earliest=-1); FR.append(f); return f
    def A(f): return ("a", RING0 + (f["id"] % cfg.ring) * 4)
    def add_m(ins, f=None):
        ins.tag = f; MF.append(ins)
        if f is not None: f["last"] = len(MF) - 1
        return len(MF) - 1
    def tr_tile(tile, bsel, first):
        for T in range(16):
            f = frag(tile, [("tr", "V", T & 7, u * 8192 + (T >> 3) * 256, u) for u in range(2)])
            for qs in range(2):
                d = OT(T >> 1, qs, T & 1)
                i = add_m(mfma(d, A(f), bsel(qs), None if first else d), f)
                marks[(tile["name"], T, qs)] = i
    def qk_tile(j):
        tile = new_tile(f"K{j}", kind="K", idx=j); par = j & 1
        marks[("K", j, "first")] = len(MF)
        for s in range(8):
            for ks in range(2):
                f = frag(tile, [("b128", "K", s & 3, ks * 8192 + (s >> 2) * 256, 0)])
                for qs in range(2):
                    d = SB(par, qs, ks)
                    c = d if s else (None if j < 2 else NM(qs))
                    i = add_m(mfma(d, A(f), ("a", QF(s, qs)), c), f)
                    marks.setdefault(("Quse", s, qs), i)
        marks[("K", j, "last")] = len(MF) - 1
    def pv_tile(j):
        tile = new_tile(f"V{j}", kind="V", idx=j); par = j & 1
        marks[("V", j, "first")] = len(MF)
        for qs in range(2):
            marks[("L", j, qs)] = add_m(mfma(LA(qs), ("a", ONES), ("v", PB(par, qs)), None if j == 0 else LA(qs)))
        tr_tile(tile, lambda qs: ("v", PB(par, qs)), j == 0)
        marks[("V", j, "last")] = len(MF) - 1
    for i in range(14):
        t = new_tile(f"W{i}", kind="W", idx=i)
        if i % 2 == 0:
            xf = frag(t, [("x", kk, qs) for kk in range(2) for qs in range(2)]); xf["x"] = True; xf["last"] = len(MF)
            FR.pop(); XFR.append(xf); xf["before"] = len(FR)
        tr_tile(t, lambda qs: ("a", XF(i, qs)), i == 0)
    marks["qproj_end"] = len(MF) - 1
    qk_tile(0); qk_tile(1)
    for j in range(16):
        pv_tile(j)
        if j + 2 < 16: qk_tile(j + 2)
    marks["attn_end"] = len(MF) - 1
    for c in range(7):
        marks[("Y", c, "first")] = len(MF)
        for half in range(2):
            tile = new_tile(f"O{c}{'ab'[half]}", kind="O", idx=c, half=half)
            for s4 in range(4):
                s = half * 4 + s4
                for nt in range(4):
                    f = frag(tile, [("tr", "K", nt, s4 * 4096 + u * 2048, u) for u in range(2)])
                    for qs in range(2):
                        d = YT(c & 1, nt, qs)
                        i = add_m(mfma(d, A(f), ("v", OT(s, qs, 0)), None if s == 0 else d), f)
                        marks.setdefault(("Ouse", s, qs), i)
                        marks[("Ydone", c, nt, qs)] = i
    NM_ = len(MF)
    RAW = 4
    def q(ins, earliest, deadline):
        ins.earliest = earliest; ins.deadline = deadline; VQ.append(ins); return ins
    q(I(f"buffer_atomic_cmpswap_x2 v[{E0}:{E0+3}], v{E0+4}, s[{S_DBG}:{S_DBG+3}], 0 offen", "store", rd=rng("v", E0, 5), tag="elect"), 3 * 64, 6 * 64)
    for s in range(8):
        for qs in range(2):
            e = marks[("W13", 2 * s + 1, qs)] + RAW; dl = marks[("Quse", s, qs)] - 1
            b = OT(s, qs, 0)
            for r in range(8): q(valu("v_mul_f32", b + r, f"s{S_SC}", b + r), e, dl)
            for r in range(4): q(valu("v_cvt_pk_bf16_f32", b + r, b + 2 * r, b + 2 * r + 1), e, dl)
        for qs in range(2):
            e = marks[("W13", 2 * s + 1, qs)] + RAW; dl = marks[("Quse", s, qs)] - 1
            b = OT(s, qs, 0)
            q(swap32(b, b + 2), e, dl); q(swap32(b + 1, b + 3), e, dl)
        for qs in range(2):
            e = marks[("W13", 2 * s + 1, qs)] + RAW; dl = marks[("Quse", s, qs)] - 1
            b = OT(s, qs, 0)
            for r in range(4): q(accw(QF(s, qs) + r, b + r), e, dl)
    def rowmax(par, emit):
        for qs in range(2):
            b = SB(par, qs, 0); t = E0 + qs
            emit(valu("v_max3_f32", t, b, b + 1, b + 2));
        for k in (3, 5):
            for qs in range(2):
                b = SB(par, qs, 0); t = E0 + qs
                emit(valu("v_max3_f32", t, t, b + k, b + k + 1))
        for qs in range(2):
            b = SB(par, qs, 0); t = E0 + qs
            emit(valu("v_max_f32", t, t, b + 7))
        for sw in (swap32, swap16):
            for qs in range(2): emit(valu("v_mov_b32", E0 + 2 + qs, E0 + qs))
            for qs in range(2): emit(sw(E0 + qs, E0 + 2 + qs))
            for qs in range(2): emit(valu("v_max_f32", E0 + qs, E0 + qs, E0 + 2 + qs))
    def expcvt(par, emit, ebase=E0, ne=8):
        pend = None; k = 0
        for qs in range(2):
            for i in range(4):
                b = SB(par, qs, 0) + 2 * i
                e0 = ebase + (k % ne); e1 = ebase + ((k + 1) % ne); k += 2
                emit(trans("v_exp_f32", e0, b)); emit(trans("v_exp_f32", e1, b + 1))
                if pend: emit(pend)
                pend = valu("v_cvt_pk_bf16_f32", PB(par, qs) + i, e0, e1)
        emit(pend)
    stubs = []
    for j in range(16):
        par = j & 1
        e = marks[("K", j, "last")] + RAW; dl = marks[("V", j, "first")] - 1
        em = lambda ins: q(ins, e, dl)
        if j == 0:
            rowmax(0, em)
            for qs in range(2):
                for r in range(4): em(valu("v_sub_f32", NM(qs) + r, f"s{S_BIAS}", E0 + qs))
        if j < 2:
            for qs in range(2):
                for r in range(8): em(valu("v_add_f32", SB(par, qs, 0) + r, SB(par, qs, 0) + r, NM(qs)))
        expcvt(par, em)
        if j > 0:
            p = PB(par, 0)
            em(valu("v_or3_b32", TMP, p, p + 1, p + 2)); em(valu("v_or3_b32", TMP + 1, p + 3, p + 4, p + 5))
            em(valu("v_or3_b32", TMP, TMP, p + 6, p + 7))
            x = valu("v_bitop3_b32", TMP, TMP, TMP + 1, f"s{S_MASK}"); x.text += " bitop3:0xa8"; em(x)
            em(I(f"v_cmp_ne_u32 vcc, 0, v{TMP}", "valu", rd=[("v", TMP)]))
            br = I(f"s_cbranch_vccnz L_stub{j}", "br", after=[I(f"L_back{j}:", "label")])
            q(br, max(e, marks[("V", j - 1, "last")]), dl)
            stubs.append((j, par))
        if j == 8:
            for r in range(4): em(I(f"v_accvgpr_read_b32 v{RDOFF + r}, a{STASH + r}", "valu", rd=[("a", STASH + r)], wr=[("v", RDOFF + r)]))
            em(I(f"buffer_load_dwordx2 v[{NONCE}:{NONCE+1}], off, s[{S_DBG}:{S_DBG+3}], 0 sc1", "vmem", wr=rng("v", NONCE, 2), tag="nonce"))
        if j == 15:
            for r in range(3):
                for nt in range(4):
                    q(valu("v_xor_b32", KA(r, nt), hex(nt * 32 | r << 16), WABASE), marks[("K", 15, "last")], dl)
            marks["wa_ready"] = dl
    for qs in range(2):
        q(trans("v_rcp_f32", E0 + qs, LA(qs)), marks[("L", 15, qs)] + RAW, marks[("Ouse", 0, 0)] - 1)
    for s in range(8):
        for qs in range(2):
            e = marks[("V15", 2 * s + 1, qs)] + RAW; dl = marks[("Ouse", s, qs)] - 1
            b = OT(s, qs, 0)
            for r in range(8): q(valu("v_mul_f32", b + r, b + r, E0 + qs), e, dl)
            for r in range(4): q(valu("v_cvt_pk_bf16_f32", b + r, b + 2 * r, b + 2 * r + 1), e, dl)
    def ws(): return f"s[{S_WS}:{S_WS+3}]"
    def flag(c):
        x = I(f"buffer_store_dwordx2 v[{NONCE}:{NONCE+1}], v{FLOFF}, {ws()}, 0 offen offset:{c * 128} sc1", "store",
              rd=rng("v", NONCE, 2) + [("v", FLOFF)], pre=[I("", "vmwait", tag=("y", c))], tag=("flag", c))
        return x
    def poll_load(half):
        return I(f"buffer_load_dwordx2 v[{POLL}:{POLL+1}], v{PLOFF}, {ws()}, 0 offen offset:{half * 512} sc1", "vmem",
                 rd=[("v", PLOFF)], wr=rng("v", POLL, 2), tag="poll")
    nchk = [0]
    def poll_check(chunks):
        half = chunks[0] >> 2; m = 0
        for c in chunks:
            assert c >> 2 == half
            m |= 0xffff << (16 * (c & 3))
        n = nchk[0]; nchk[0] += 1; spins.append(n)
        a = I(f"v_cmp_ne_u64 vcc, v[{POLL}:{POLL+1}], v[{NONCE}:{NONCE+1}]", "valu", rd=rng("v", POLL, 2) + rng("v", NONCE, 2),
              pre=[salu(f"s_mov_b32 s{S_PM}, {hex(m & 0xffffffff)}"), salu(f"s_mov_b32 s{S_PM+1}, {hex(m >> 32)}"), salu(f"s_mov_b32 s{S_PO}, {half * 512}"),
                   I("", "vmwait", tag="poll")])
        b = I(f"s_and_b64 vcc, vcc, s[{S_PM}:{S_PM+1}]\ns_cbranch_scc1 L_spin{n}", "br", after=[I(f"L_spun{n}:", "label")], tag=("chk", tuple(chunks)))
        return [a, b]
    def rd_loads(c):
        return [I(f"buffer_load_dwordx4 {rt('a', RD(c, i), 4)}, v{RDOFF}, {ws()}, s{S_SOFF2} offen offset:{i * 1024}{cfg.rdflag}", "vmem",
                  rd=[("v", RDOFF)], wr=rng("a", RD(c, i), 4), tag=("rd", c),
                  pre=[salu(f"s_mov_b32 s{S_SOFF2}, {c * 262144}")] if i == 0 else []) for i in range(4)]
    ev = []
    k = 0
    for c in range(7):
        dl = marks[("Y", c + 2, "first")] - 1 if c + 2 < 7 else NM_ - 1
        for np_ in range(2):
            for qs in range(2):
                e = min(marks[("Ydone", c, 2 * np_ + 1, qs)] + RAW, NM_ - 1)
                st = 72 + (k % 6) * 4; k += 1
                g_ = []
                for t in range(2):
                    y = YT(c & 1, 2 * np_ + t, qs)
                    g_.append(valu("v_cvt_pk_bf16_f32", st + 2 * t, y, y + 1))
                    g_.append(valu("v_cvt_pk_bf16_f32", st + 2 * t + 1, y + 2, y + 3))
                g_.append(swap32(st, st + 2)); g_.append(swap32(st + 1, st + 3))
                j = np_ * 2 + qs
                g_.append(I(f"buffer_store_dwordx4 {rt('v', st, 4)}, v{STOFF}, {ws()}, s{S_SOFF2} offen{cfg.stflag}", "store",
                            rd=rng("v", st, 4) + [("v", STOFF)], pre=[salu(f"s_mov_b32 s{S_SOFF2}, {c * 262144 + j * 16384}")], tag=("y", c)))
                ev.append((e, dl, g_))
        e = marks[("Ydone", c, 3, 1)] + 24 + cfg.flag_lag
        if e < NM_ - 8: ev.append((e, NM_ - 1, [flag(c)])); flagged.append(c)
    y0 = marks[("Y", 0, "first")]
    for chunks, tp, tc in cfg.polls:
        ev.append((y0 + tp, NM_ - 1, [poll_load(chunks[0] >> 2)]))
        g_ = poll_check(chunks)
        for c in chunks: g_ += rd_loads(c); loaded.append(c)
        ev.append((y0 + tc, NM_ - 1, g_))
    ev.sort(key=lambda x: x[0])
    for e, dl, g_ in ev:
        for x in g_: q(x, e, dl)
    TAIL = []
    rest = [c for c in range(7) if c not in loaded]
    early = [c for c in rest if c in flagged and c < 4]
    if early: TAIL.append(poll_load(0))
    for c in range(7):
        if c not in flagged: TAIL.append(flag(c))
    if early:
        TAIL += poll_check(early)
        for c in early: TAIL += rd_loads(c)
    def red(c):
        r = []
        for i in range(4):
            x = mfma(RA(c), ("a", ASEL), ("a", RD(c, i)), None if i == 0 else RA(c))
            if i == 0: x.pre = [I("", "vmwait", tag=("rd", c))]
            r.append(x)
        return r
    def fin(c):
        a = RA(c)
        return [valu("v_cvt_pk_bf16_f32", a, a, a + 1), valu("v_cvt_pk_bf16_f32", a + 1, a + 2, a + 3),
                I(f"buffer_store_dwordx2 v[{a}:{a+1}], v{OUTOFF}, s[{S_OUT}:{S_OUT+3}], s{S_TWO + c} offen", "store", rd=rng("v", a, 2) + [("v", OUTOFF)])]
    done = [c for c in range(7) if c in loaded or c in early]
    left = [c for c in rest if c not in early]
    first = True
    for half in range(2):
        cs = [c for c in left if c >> 2 == half]
        if not cs: continue
        TAIL.append(poll_load(half))
        if first:
            for c in done: TAIL += red(c)
            for c in done: TAIL += fin(c)
            first = False
        TAIL += poll_check(cs)
        for c in cs: TAIL += rd_loads(c)
    for c in left: TAIL += red(c)
    for c in left: TAIL += fin(c)
    m = 1 << 30
    for ins in reversed(VQ):
        m = min(m, ins.deadline); ins.deadline = m
    for f in FR:
        if f["tile"]["kind"] == "O": f["earliest"] = marks["wa_ready"] + 1
    byname = {t["name"]: t for t in tiles}
    order = []
    for t in tiles:
        if t["kind"] == "W" and t["idx"] % 2 == 0: order.append(f"X{t['idx'] // 2}"); t["parts"] = 2
        order.append(t["name"])
    if cfg.early:
        kv = [n for n in order if n[0] in "KV"]; xw = [n for n in order if n[0] in "XW"]; oo = [n for n in order if n[0] == "O"]
        order = []
        for p, n in enumerate(xw):
            for pos, cnt in cfg.early:
                if pos == p:
                    for _ in range(cnt): order.append(kv.pop(0))
            order.append(n)
        order += kv + oo
    def dma_ops(name, slot):
        k = name[0]; ops = []
        t = byname["W" + str(2 * int(name[1:])) if k == "X" else name]
        if k == "X":
            pre = []; so = S_T128 + t["idx"] // 2
            srd, vo, fl = S_X, XOFF, cfg.xflag; t["xslot"] = slot
        else:
            so = S_SOFF; t["slot"] = slot
        if k == "W":
            i = t["idx"]
            pre = [salu(f"s_add_u32 s{S_SOFF}, s{S_TWQ + i // 2}, {(i & 1) * 262144}")]
            srd, vo, fl = S_WQ, WQOFF, cfg.wflag
        elif k in "KV":
            pre = [salu(f"s_mov_b32 s{S_SOFF}, {t['idx'] * 16384}")]
            srd, vo, fl = (S_K if k == "K" else S_V), KVOFF, cfg.kvf(k, t["idx"])
        elif k == "O":
            pre = [salu(f"s_add_u32 s{S_SOFF}, s{S_TWO + t['idx']}, {t['half'] * 114688}")]
            srd, vo, fl = S_WO, WOOFF, cfg.wflag
        pre.insert(0, I(f"s_add_u32 m0, s{S_WB}, {slot * 16384}", "salu", tag="m0"))
        for p in range(4):
            ops.append(I(f"buffer_load_dwordx4 v{vo + p}, s[{srd}:{srd+3}], s{so} offen offset:{p * 1024}{fl} lds", "dma",
                         rd=[("v", vo + p)], pre=pre if p == 0 else [], tag=("tile", t["n"])))
        t["issued"] = t.get("issued", 0) + 1
        return ops

    out = []
    ds_list = []
    ds_cov = [0]
    vm_list = []
    vm_cov = [0]
    free = list(range(cfg.nslots)); MQ = []; oi = [0]; freed_upto = [0]
    bar_done = [-1]
    bar_state = [0]
    last_dma = [-100]
    stats = dict(over=0, dsds=0, waits=0)
    elect_ok = [False]
    touch = []; touched = cfg.touched = []
    def refill():
        while free and oi[0] < len(order):
            n = order[oi[0]]
            if n[0] != "X" and bar_done[0] >= 14 and byname[n]["n"] > bar_done[0] + cfg.max_ahead: break
            MQ.extend(dma_ops(n, free.pop(0))); oi[0] += 1
    def emit(ins):
        if ins.kind == "vmwait":
            idx = max(i for i, x in enumerate(vm_list) if x == ins.tag)
            if idx < vm_cov[0]: return
            n = min(len(vm_list) - 1 - idx, 63)
            ins = I(f"s_waitcnt vmcnt({n})", "wait"); vm_cov[0] = len(vm_list) - n
        if ins.tag == "nonce": assert elect_ok[0]
        if isinstance(ins.tag, tuple) and ins.tag[0] == "chk":
            for c in ins.tag[1]: assert ("flag", c) in vm_list, "own flag must precede the wait"
        if ins.kind == "bar" and "elect" in vm_list[:vm_cov[0]]: elect_ok[0] = True
        out.append(ins)
        if ins.kind in ("vmem", "dma", "store"): vm_list.append(ins.tag)
        for a in ins.after: out.append(a)
    def emit_vm(ins):
        for p in ins.pre: emit(p)
        ins.pre = []; emit(ins)
    DS = []
    for f in FR:
        for xf in XFR:
            if xf["before"] == f["id"]: DS += [(xf, r) for r in xf["reads"]]
        DS += [(f, r) for r in f["reads"]]
    di = [0]; vi = [0]
    def ds_ins(f, r):
        if r[0] == "x":
            _, kk, qs = r; slot = f["tile"]["xslot"]; a = XF(f["tile"]["idx"] + kk, qs); reg = XA(slot >> 2, kk)
            return I(f"ds_read_b128 {rt('a', a, 4)}, v{reg} offset:{(slot & 3) * 16384 + qs * 2048}", "ds", rd=[("v", reg)], wr=rng("a", a, 4))
        kind, at, idx, imm, u = r
        slot = f["tile"]["slot"]; reg = (VA if at == "V" else KA)(slot >> 2, idx); off = (slot & 3) * 16384 + imm
        a = A(f)[1]
        if kind == "tr": return I(f"ds_read_b64_tr_b16 {rt('a', a + 2 * u, 2)}, v{reg} offset:{off}", "ds", rd=[("v", reg)], wr=rng("a", a + 2 * u, 2))
        return I(f"ds_read_b128 {rt('a', a, 4)}, v{reg} offset:{off}", "ds", rd=[("v", reg)], wr=rng("a", a, 4))
    def ring_ok(f, g):
        if f["earliest"] > g: return False
        return f["id"] < cfg.ring or FR[f["id"] - cfg.ring]["last"] <= g
    def ds_ready(g):
        if di[0] >= len(DS): return False
        f, r = DS[di[0]]
        return ring_ok(f, g) and f["tile"]["n"] <= bar_done[0]
    def emit_ds(g):
        f, r = DS[di[0]]; emit(ds_ins(f, r)); ds_list.append(g); f["lastrd"] = len(ds_list) - 1; f["tile"]["lastrd"] = len(ds_list) - 1; di[0] += 1
    def vm_wait(t):
        assert t.get("issued", 0) == t.get("parts", 1), ("tile not issued", t)
        while any(x.tag == ("tile", t["n"]) for x in MQ):
            emit_vm(MQ.pop(0)); stats["over"] += 1
        idx = max(i for i, x in enumerate(vm_list) if x == ("tile", t["n"]))
        if idx < vm_cov[0]: return
        n = min(len(vm_list) - 1 - idx, 63)
        emit(I(f"s_waitcnt vmcnt({n})", "wait")); vm_cov[0] = len(vm_list) - n
    def barrier(t):
        emit(I("s_barrier", "bar")); bar_done[0] = t["n"]
        if cfg.cpf and t["n"] % cfg.cpf_every == 0 and t["n"] > 0: touch.append(t["n"])
        while freed_upto[0] < len(tiles):
            o = tiles[freed_upto[0]]
            if o["n"] < t["n"] and "lastrd" in o and o["lastrd"] < ds_cov[0] and not any(ff["tile"] is o for ff, _ in DS[di[0]:di[0] + 40]):
                free.append(o["slot"]); freed_upto[0] += 1
                if "xslot" in o: free.append(o["xslot"])
            else: break
        refill()
    def next_bar_tile(g, look=0):
        if di[0] >= len(DS): return None
        f, r = DS[min(di[0] + look, len(DS) - 1)]
        if f["tile"]["n"] > bar_done[0] and ring_ok(f, g + 2): return tiles[bar_done[0] + 1]
        return None
    def lgkm_wait(f, g):
        need = f["lastrd"] + 1
        if need <= ds_cov[0]: return False
        cov = need
        while cov < len(ds_list) and ds_list[cov] <= g - cfg.lat: cov += 1
        cov = max(cov, len(ds_list) - 15)
        emit(I(f"s_waitcnt lgkmcnt({len(ds_list) - cov})", "wait")); ds_cov[0] = cov; stats["waits"] += 1
        return True
    def stamp(k):
        if cfg.stamps: emit(I(f"{cfg.clk} s[{S_STT}:{S_STT + 1}]\ns_waitcnt lgkmcnt(0)\ns_mov_b32 s{S_STAMP + k}, s{S_STT}", "smem"))
    stamp_at = {}
    if cfg.stamps:
        pts = [0, marks["qproj_end"], marks[("V", 0, "first")], marks[("V", 4, "first")], marks[("V", 8, "first")], marks[("V", 12, "first")], marks["attn_end"],
               marks[("Y", 1, "first")], marks[("Y", 4, "first")], NM_ - 1]
        if cfg.stampset == "q": pts = [0, 64, 128, 192, 256, 320, 384, marks["qproj_end"], marks[("K", 1, "first")], marks[("V", 0, "first")]]
        if cfg.stampset == "t": pts = [marks["attn_end"], marks[("Y", 1, "first")], marks[("Y", 4, "first")], NM_ - 1]
        for k, p in enumerate(pts): stamp_at[p] = k + 1
    refill()
    for _ in range(cfg.npro): emit_vm(MQ.pop(0))
    pro_end = len(out)
    for g in range(-1, NM_):
        if g >= 0: emit(MF[g])
        if g in stamp_at:
            stamp(stamp_at[g]); ds_cov[0] = len(ds_list)
        nxt = MF[g + 1] if g + 1 < NM_ else None
        nf = nxt.tag if nxt is not None else None
        if nf is not None and nf["first"] == g + 1:
            if "lastrd" not in nf or any(ff is nf for ff, _ in DS[di[0]:di[0] + 8]):
                while any(ff is nf for ff, _ in DS[di[0]:di[0] + 8]) or (g == -1 and ds_ready(g) and len(ds_list) < 12):
                    f, r = DS[di[0]]
                    if f["tile"]["n"] > bar_done[0]:
                        t = tiles[bar_done[0] + 1]
                        if bar_state[0] == 0: vm_wait(t)
                        bar_state[0] = 0; barrier(t)
                    emit_ds(g); stats["over"] += 1
        sc = 0
        if nf is not None and nf["first"] == g + 1:
            if lgkm_wait(nf, g): sc += 1
        if sc == 0:
            t = next_bar_tile(g, 2)
            if t is not None and bar_state[0] == 0 and t.get("issued", 0) == t.get("parts", 1) and not any(x.tag == ("tile", t["n"]) for x in MQ):
                vm_wait(t); bar_state[0] = 1; sc += 1
            elif bar_state[0] == 1 and next_bar_tile(g, 0) is not None:
                barrier(tiles[bar_done[0] + 1]); bar_state[0] = 0; sc += 1
        if sc == 0 and touch:
            n = touch.pop(0)
            emit(I(f"L_t{n}:", "label")); emit(I(f"s_load_dword s98, s[96:97], TOUCH{n}", "smem")); sc += 1
            touched.append(n)
        if sc == 0 and MQ and MQ[0].pre:
            emit(MQ[0].pre.pop(0)); sc += 1
        if sc == 0 and vi[0] < len(VQ) and VQ[vi[0]].pre and VQ[vi[0]].earliest <= g:
            emit(VQ[vi[0]].pre.pop(0)); sc += 1
        if sc == 0 and vi[0] < len(VQ) and VQ[vi[0]].kind == "br" and VQ[vi[0]].earliest <= g:
            emit(VQ[vi[0]]); vi[0] += 1; sc += 1
        def slack(k):
            if di[0] + k >= len(DS): return 1 << 20
            return DS[di[0] + k][0]["first"] - 1 - cfg.lat - g
        def vq():
            if vi[0] < len(VQ) and VQ[vi[0]].earliest <= g: return VQ[vi[0]]
            return None
        slots = 2
        v = vq()
        dma_ok = MQ and not MQ[0].pre and g - last_dma[0] >= cfg.dma_space and not (out[-1].tag == "m0")
        urgent = ds_ready(g) and slack(0) <= 0
        if not urgent and dma_ok:
            emit_vm(MQ.pop(0)); last_dma[0] = g; slots = 0
        elif not urgent and v is not None and v.kind in ("trans", "store", "vmem") and not v.pre:
            emit(v); vi[0] += 1; slots = 0
        else:
            if ds_ready(g): emit_ds(g); slots -= 1
            v = vq()
            plain = v is not None and v.kind in ("valu", "perm") and not v.pre
            if slots == 1 and ds_ready(g) and (slack(0) <= 0 or not plain):
                emit_ds(g); slots -= 1; stats["dsds"] += 1
            while slots > 0:
                v = vq()
                if v is not None and v.kind in ("valu", "perm") and not v.pre:
                    emit(v); vi[0] += 1; slots -= 1
                else: break
        while vi[0] < len(VQ) and VQ[vi[0]].deadline <= g:
            emit_vm(VQ[vi[0]]); vi[0] += 1; stats["over"] += 1
    tk = [5]
    for n, x in enumerate(TAIL):
        emit_vm(x)
        if cfg.stampset == "t" and tk[0] < 11:
            nx = TAIL[n + 1] if n + 1 < len(TAIL) else None
            if (isinstance(x.tag, tuple) and x.tag[0] == "chk") or x.tag == ("flag", 6) or (isinstance(x.tag, tuple) and x.tag[0] == "rd" and not (isinstance(nx.tag, tuple) and nx.tag[0] == "rd")):
                stamp(tk[0]); tk[0] += 1
    assert di[0] == len(DS) and vi[0] == len(VQ) and not MQ and oi[0] == len(order)
    if cfg.verbose: print("sched stats", stats, "mfma", NM_, "ins", len(out), file=sys.stderr)

    rare = []
    for j, par in stubs:
        rare.append(I(f"L_stub{j}:", "label")); rare.append(I(f"s_call_b64 s[{S_RET}:{S_RET+1}], L_rescale{par}", "br")); rare.append(I(f"s_branch L_back{j}", "br"))
    for n in spins:
        rare.append(I(f"L_spin{n}:", "label")); rare.append(I(f"s_call_b64 s[{S_RET}:{S_RET+1}], L_wait", "br")); rare.append(I(f"s_branch L_spun{n}", "br"))
    for t in ["L_wait:", f"s_mov_b32 s{S_SPIN}, 0", "L_wait1:",
              f"buffer_load_dwordx2 v[{POLL}:{POLL+1}], v{PLOFF}, s[{S_WS}:{S_WS+3}], s{S_PO} offen sc1",
              f"s_add_u32 s{S_SPIN}, s{S_SPIN}, 1", f"s_cmp_gt_u32 s{S_SPIN}, 0x40000", "s_cbranch_scc1 L_end",
              "s_waitcnt vmcnt(0)", f"v_cmp_ne_u64 vcc, v[{POLL}:{POLL+1}], v[{NONCE}:{NONCE+1}]",
              f"s_and_b64 vcc, vcc, s[{S_PM}:{S_PM+1}]", "s_cbranch_scc1 L_wait1", f"s_setpc_b64 s[{S_RET}:{S_RET+1}]"]:
        rare.append(I(t, "salu"))
    for par in range(2):
        R = []
        R.append(I(f"L_rescale{par}:", "label")); R.append(I("s_nop 15", "nop"))
        rowmax(par, R.append)
        for qs in range(2):
            R.append(valu("v_sub_f32", E0 + qs, E0 + qs, f"s{S_BIAS}"))
            R[-1].text = f"v_subrev_f32 v{E0+qs}, s{S_BIAS}, v{E0+qs}"
        for qs in range(2): R.append(valu("v_max_f32", E0 + qs, "0", E0 + qs))
        for qs in range(2):
            x = trans("v_exp_f32", E0 + 2 + qs, ("-", E0 + qs)); R.append(x)
        for qs in range(2):
            for r in range(4): R.append(valu("v_sub_f32", NM(qs) + r, NM(qs) + r, E0 + qs))
            for pp in range(2):
                for r in range(8): R.append(valu("v_sub_f32", SB(pp, qs, 0) + r, SB(pp, qs, 0) + r, E0 + qs))
            for r in range(4): R.append(valu("v_mul_f32", LA(qs) + r, LA(qs) + r, E0 + 2 + qs))
            for s in range(8):
                for r in range(8): R.append(valu("v_mul_f32", OT(s, qs, 0) + r, OT(s, qs, 0) + r, E0 + 2 + qs))
        expcvt(par, R.append, ebase=E0 + 4, ne=4)
        R.append(I("s_nop 3", "nop")); R.append(I(f"s_setpc_b64 s[{S_RET}:{S_RET+1}]", "br"))
        rare += fix_hazards(R)
    return out, pro_end, rare

def fix_hazards(seq, verbose=False):
    res = []; pos = 0
    lw = {}
    lc = {}
    ls = {}
    m0w = -100; nn = 0
    for ins in seq:
        if ins.kind == "label": res.append(ins); continue
        need = 0
        def req(p, n):
            nonlocal need
            need = max(need, n - (pos - p - 1))
        k = ins.kind
        isv = k in ("valu", "trans", "perm")
        for r in ins.rd + ins.rdc:
            if r in lw:
                p, wk = lw[r]
                if k == "mfma":
                    if wk in ("valu", "trans", "perm"): req(p, 2)
                    elif wk == "mfma":
                        if r in ins.rd: req(p, 8)
                        elif not (ins.rdc == ins.wr and lw[r][0] == lw[ins.wr[0]][0]): req(p, 6)
                elif wk == "mfma": req(p, 8)
                elif wk == "trans" and k in ("valu", "perm"): req(p, 1)
                if k == "perm" and wk in ("valu", "trans", "perm"): req(p, 2)
        for r in ins.wr:
            if k != "mfma" and r in lw and lw[r][1] == "mfma": req(lw[r][0], 8)
            if isv and r in lc: req(lc[r], 3)
            if isv and r in ls: req(ls[r], 2)
        if k == "dma": req(m0w, 1)
        if need > 0:
            res.append(I(f"s_nop {need - 1}", "nop")); pos += need; nn += need
        res.append(ins)
        for r in ins.wr: lw[r] = (pos, k)
        if k == "mfma":
            for r in ins.rdc: lc[r] = pos
        if k == "store":
            for r in ins.rd: ls[r] = pos
        if ins.tag == "m0": m0w = pos
        if k == "nop": pos += int(ins.text.split()[1]) + 1
        else: pos += 1
    if verbose: print("hazard nops inserted (states):", nn, file=sys.stderr)
    return res

def srd(P, d, lo, off, n):
    P(f"s_add_u32 s{d}, s{lo}, {off}"); P(f"s_addc_u32 s{d+1}, s{lo+1}, 0")
    P(f"s_mov_b32 s{d+2}, {n}"); P(f"s_mov_b32 s{d+3}, 0x20000")

def kd(P, name, vg, acc):
    P(f".amdhsa_kernel {name}")
    for l in [f"next_free_vgpr {vg}", "next_free_sgpr 102", f"accum_offset {acc}", "group_segment_fixed_size 0", "kernarg_size 104",
              "user_sgpr_count 2", "user_sgpr_kernarg_segment_ptr 1", "system_sgpr_workgroup_id_x 1"]:
        P("  .amdhsa_" + l)
    P(".end_amdhsa_kernel")

def gen(cfg):
    L = []; P = L.append
    KN = NAME + "_kernel"
    P("; One workgroup per (branch, batch, head): Q projection + attention + output projection of that head,")
    P("; then the 16 heads of a (branch, batch) group exchange their partial outputs through d_ws and reduce them.")
    P("; @launch grid=(256,1,1) block=(256,1,1) lds=163840")
    P('.amdgcn_target "amdgcn-amd-amdhsa--gfx950"')
    P(".text"); P(f".globl {KN}"); P(".p2align 8"); P(f".type {KN},@function"); P(f"{KN}:")
    P("s_cmp_ge_u32 s2, 256"); P("s_cbranch_scc1 L_end")
    P("s_lshr_b32 s3, s2, 7")
    P("s_mul_i32 s4, s3, 40")
    P("s_add_u32 s4, s0, s4"); P("s_addc_u32 s5, s1, 0")
    P("s_load_dwordx8 s[40:47], s[4:5], 0")
    P("s_load_dwordx2 s[48:49], s[4:5], 32")
    P("s_load_dwordx4 s[76:79], s[0:1], 80")
    P("s_load_dwordx2 s[50:51], s[0:1], 96")
    P(f"s_memrealtime s[80:81]")
    if cfg.stamps: P(f"{cfg.clk} s[{S_STT}:{S_STT+1}]")
    P("s_bfe_u32 s53, s2, 0x30003")
    P("s_and_b32 s52, s2, 7")
    P("s_bfe_u32 s54, s2, 0x10006")
    P("s_lshl_b32 s75, s52, 1"); P("s_add_u32 s75, s75, s54")
    P("s_lshl_b32 s56, s53, 3"); P("s_add_u32 s56, s56, s52")
    P("s_lshl_b32 s57, s53, 4"); P("s_add_u32 s57, s57, s75")
    P("s_cmp_eq_u32 s3, 0"); P("s_cselect_b32 s56, s56, s57"); P("s_lshl_b32 s56, s56, 18")
    P("s_mul_i32 s57, s53, 114688")
    P("s_lshl_b32 s58, s75, 9")
    P("s_mul_i32 s59, s75, 229376")
    P("s_lshl_b32 s74, s3, 3"); P("s_add_u32 s74, s74, s53")
    P(f"s_mul_i32 s60, s74, {GR}")
    P("s_lshl_b32 s61, s74, 4")
    P("s_lshl_b32 s62, s54, 2"); P("s_add_u32 s62, s62, s53"); P("s_cmp_ge_u32 s62, 7"); P("s_cselect_b32 s63, 7, 0"); P("s_sub_u32 s62, s62, s63")
    P("s_mov_b32 s73, s53")
    P("v_lshrrev_b32 v1, 6, v0")
    P("v_and_b32 v0, 63, v0")
    P("v_readfirstlane_b32 s6, v1")
    P("v_lshrrev_b32 v2, 5, v0")
    P("v_and_b32 v3, 31, v0")
    P(f"s_lshl_b32 s{S_WB}, s6, 12")
    P("s_and_b32 s7, s6, 1"); P("s_lshl_b32 s7, s7, 4"); P("s_lshr_b32 s63, s6, 1"); P("s_lshl_b32 s63, s63, 2"); P("s_add_u32 s7, s7, s63")
    P("v_add_u32 v56, s7, v2"); P("v_lshlrev_b32 v56, 13, v56")
    P("v_lshlrev_b32 v57, 1, v2"); P("v_xor_b32 v57, v57, v3")
    P("v_lshlrev_b32 v58, 9, v2"); P(f"v_add_u32 v58, s{S_WB}, v58")
    for p in range(4):
        P(f"v_xor_b32 v59, {p * 4}, v57")
        P(f"v_lshl_add_u32 v{KVOFF + p}, v59, 4, v58")
        P(f"v_lshl_add_u32 v{WQOFF + p}, v59, 4, v56")
        kk = [0, 2, 8, 10][p]
        if p: P(f"v_add_u32 v{WQOFF + p}, {kk * 8192 - 1024 * p}, v{WQOFF + p}")
    P("v_and_b32 v60, 15, v0"); P("v_lshrrev_b32 v61, 4, v0")
    P("v_lshrrev_b32 v62, 3, v0"); P("s_lshl_b32 s7, s6, 5"); P("v_add_u32 v62, s7, v62"); P("v_mul_u32_u24 v62, 896, v62")
    P("v_and_b32 v63, 7, v0"); P("v_xor_b32 v63, v63, v61")
    P(f"v_lshl_add_u32 v{XOFF}, v63, 4, v62"); P("v_xor_b32 v63, 4, v63"); P(f"v_lshl_add_u32 v{XOFF + 1}, v63, 4, v62")
    P(f"v_add_u32 v{XOFF + 2}, {2 * (7168 - 1024)}, v{XOFF}"); P(f"v_add_u32 v{XOFF + 3}, {3 * (7168 - 1024)}, v{XOFF + 1}")
    P(f"v_add_u32 v{XOFF + 1}, {7168 - 1024}, v{XOFF + 1}")
    P("s_waitcnt lgkmcnt(0)")
    srd(P, S_X, 40, "s57", 114688)
    srd(P, S_WQ, 46, "s58", 448 * 8192); P(f"s_sub_u32 s{S_WQ+2}, s{S_WQ+2}, s58")
    srd(P, S_K, 42, "s56", 262144)
    srd(P, S_V, 44, "s56", 262144)
    srd(P, S_WO, 48, "s59", 229376)
    srd(P, S_WS, 50, "s60", GR)
    srd(P, S_DBG, 78, "s61", 8)
    srd(P, S_OUT, 76, 0, 8 * 128 * 896 * 2)
    if cfg.stamps: P("s_mov_b32 s4, s50"); P("s_mov_b32 s5, s51"); P(f"s_mov_b32 s{S_STAMP}, s{S_STT}")
    P("s_mov_b32 s7, s62")
    for u in range(7):
        P(f"s_lshl_b32 s{S_TWQ + u}, s7, 19"); P(f"s_lshl_b32 s{S_T128 + u}, s7, 7")
        if u < 6: P("s_add_u32 s7, s7, 1"); P("s_cmp_eq_u32 s7, 7"); P("s_cselect_b32 s7, 0, s7")
    body, pro_end, rare = build_main(cfg)
    late = []
    A = late.append
    if cfg.cpf:
        A("s_getpc_b64 s[96:97]"); A("L_pc:")
        A("s_lshr_b32 s98, s2, 3"); A("s_lshl_b32 s98, s98, 2"); A("s_add_u32 s98, s98, s6"); A("s_and_b32 s98, s98, 63"); A("s_lshl_b32 s98, s98, 6")
        A("s_add_u32 s96, s96, s98"); A("s_addc_u32 s97, s97, 0")
        for k in range(2): A(f"s_load_dword s98, s[96:97], {k * 4096}")
    A(f"s_mov_b32 s{S_SC}, {hex(f2u(1.4426950408889634 / 16.0))}")
    A(f"s_mov_b32 s{S_MASK}, 0x40004000"); A(f"s_mov_b32 s{S_BIAS}, {hex(f2u(-BIAS))}")
    A("v_lshrrev_b32 v56, 1, v60"); A("v_xor_b32 v56, v56, v61"); A("v_lshlrev_b32 v56, 4, v56"); A("v_lshl_or_b32 v56, v60, 7, v56"); A(f"v_add_u32 v56, s{S_WB}, v56")
    for r in range(3):
        for kk in range(2): A(f"v_xor_b32 v{XA(r, kk)}, {hex(kk * 64 | r << 16)}, v56")
    A("v_lshrrev_b32 v56, 2, v0")
    A("v_and_b32 v57, 3, v0")
    A("v_and_b32 v58, 1, v57"); A("v_lshrrev_b32 v59, 1, v57"); A("v_lshl_or_b32 v57, v58, 1, v59")
    A("v_and_b32 v58, 7, v56"); A("v_lshlrev_b32 v58, 5, v58")
    A("v_lshl_or_b32 v58, v56, 9, v58"); A("v_lshl_or_b32 v58, v57, 3, v58")
    for r in range(3):
        for t in range(8): A(f"v_xor_b32 v{VA(r, t)}, {hex(t * 32 | r << 16)}, v58")
    A("v_bfe_u32 v58, v56, 1, 2"); A("v_lshlrev_b32 v58, 5, v58"); A("v_lshl_or_b32 v58, v56, 7, v58"); A(f"v_lshl_or_b32 v{WABASE}, v57, 3, v58")
    A("v_and_b32 v58, 7, v60"); A("v_lshlrev_b32 v58, 1, v58"); A("v_xor_b32 v58, v58, v61"); A("v_lshlrev_b32 v58, 4, v58"); A("v_lshl_or_b32 v58, v60, 9, v58")
    for r in range(3):
        for s in range(4): A(f"v_xor_b32 v{KA(r, s)}, {hex(s * 64 | r << 16)}, v58")
    A("v_lshrrev_b32 v56, 3, v0"); A("v_and_b32 v57, 3, v56"); A("v_lshrrev_b32 v58, 2, v56"); A("v_lshl_or_b32 v57, v58, 3, v57")
    A("s_lshl_b32 s7, s6, 5"); A("v_add_u32 v57, s7, v57"); A("v_mul_u32_u24 v57, 896, v57")
    A("v_and_b32 v58, 6, v56"); A("v_and_b32 v59, 7, v0"); A("v_xor_b32 v58, v58, v59"); A(f"v_lshl_add_u32 v{WOOFF}, v58, 4, v57")
    for p in range(1, 4):
        A(f"v_add_u32 v{WOOFF + p}, {(16 * (p >> 1) + 4 * (p & 1)) * 896 - 1024 * p}, v{WOOFF}")
    A("s_cmp_eq_u32 s73, 7"); A("s_cselect_b32 s7, 0, s73")
    for u in range(7):
        A(f"s_lshl_b32 s{S_TWO + u}, s7, 7")
        if u < 6: A("s_add_u32 s7, s7, 1"); A("s_cmp_eq_u32 s7, 7"); A("s_cselect_b32 s7, 0, s7")
    A("s_lshl_b32 s7, s6, 16"); A("s_lshl_b32 s63, s75, 8"); A("s_add_u32 s7, s7, s63")
    A("v_lshlrev_b32 v56, 12, v61"); A("v_lshl_or_b32 v56, v60, 4, v56"); A(f"v_add_u32 v{STOFF}, s7, v56")
    A("s_lshl_b32 s7, s75, 14"); A(f"s_add_u32 s7, s7, s{S_WB}"); A("v_lshlrev_b32 v56, 4, v0"); A("v_add_u32 v56, s7, v56"); A(f"v_accvgpr_write_b32 a{STASH}, v56")
    A("s_lshl_b32 s7, s6, 10"); A("s_lshl_b32 s63, s75, 3"); A("s_add_u32 s7, s7, s63"); A(f"s_add_u32 s7, s7, {FLAG0}")
    A("v_cmp_eq_u32 vcc, 0, v0"); A(f"v_mov_b32 v57, {hex(OOR)}"); A("v_mov_b32 v56, s7"); A("v_cndmask_b32 v56, v57, v56, vcc"); A(f"v_accvgpr_write_b32 a{STASH + 1}, v56")
    A("s_cmp_eq_u32 s6, 0"); A(f"s_cselect_b32 s7, 0, {hex(OOR)}"); A("v_mov_b32 v56, s7"); A(f"v_cndmask_b32 v1, v57, v56, vcc")
    A("s_lshr_b32 s7, s75, 2"); A("s_lshl_b32 s7, s7, 10"); A(f"s_add_u32 s7, s7, {FLAG0}"); A("v_lshlrev_b32 v56, 3, v0"); A("v_add_u32 v56, s7, v56"); A(f"v_accvgpr_write_b32 a{STASH + 2}, v56")
    A("s_lshl_b32 s7, s73, 7"); A("s_lshr_b32 s63, s75, 2"); A("s_lshl_b32 s63, s63, 5"); A("s_add_u32 s7, s7, s63")
    A("s_and_b32 s63, s75, 1"); A("s_lshl_b32 s63, s63, 4"); A("s_add_u32 s7, s7, s63")
    A("v_add_u32 v56, s7, v60"); A("v_mul_u32_u24 v56, 1792, v56")
    A("s_mul_i32 s7, s3, 896"); A("s_bfe_u32 s63, s75, 0x10001"); A("s_lshl_b32 s63, s63, 6"); A("s_add_u32 s7, s7, s63")
    A("s_lshl_b32 s63, s6, 4"); A("s_add_u32 s7, s7, s63")
    A("v_lshl_add_u32 v56, v61, 3, v56"); A("v_add_u32 v56, s7, v56")
    A("v_cmp_gt_u32 vcc, 32, v0"); A("s_nop 1"); A("v_cndmask_b32 v56, v57, v56, vcc"); A(f"v_accvgpr_write_b32 a{STASH + 3}, v56")
    A("v_and_b32 v56, 1, v60"); A("v_lshlrev_b32 v56, 4, v56"); A("v_lshlrev_b32 v56, v56, 0x3f80".replace("v56, 0x3f80", "v56, v58") if False else "v_mov_b32 v58, 0x3f80")
    A("v_lshlrev_b32 v56, v56, v58"); A("v_lshrrev_b32 v57, 1, v60")
    for r in range(4):
        A(f"v_cmp_eq_u32 vcc, {r}, v57"); A("s_nop 1"); A("v_cndmask_b32 v58, 0, v56, vcc"); A(f"v_accvgpr_write_b32 a{ASEL + r}, v58")
    A("v_mov_b32 v56, 0x3f803f80")
    for r in range(4): A(f"v_accvgpr_write_b32 a{ONES + r}, v56")
    A(f"v_mov_b32 v{E0}, s80"); A(f"v_mov_b32 v{E0+1}, s81"); A(f"v_mov_b32 v{E0+2}, 0"); A(f"v_mov_b32 v{E0+3}, 0"); A(f"v_mov_b32 v{E0+4}, v1")
    seq = body[:pro_end] + [I(t, "label" if t.endswith(":") else "salu") for t in late] + body[pro_end:]
    seq = fix_hazards(seq, cfg.verbose)
    for ins in seq: P(ins.text)
    if cfg.stamps:
        P("s_waitcnt vmcnt(0)"); P(f"{cfg.clk} s[{S_STT}:{S_STT + 1}]"); P("s_waitcnt lgkmcnt(0)"); P(f"s_mov_b32 s{S_STAMP + 11}, s{S_STT}")
        P(f"s_add_u32 s8, s4, {64 << 20}"); P("s_addc_u32 s9, s5, 0"); P("s_mov_b32 s10, 0x100000"); P("s_mov_b32 s11, 0x20000")
        P("s_lshl_b32 s7, s2, 2"); P("s_add_u32 s7, s7, s6"); P("s_lshl_b32 s7, s7, 6"); P("v_mov_b32 v1, s7")
        P("s_mov_b64 exec, 1")
        for k in range(12):
            P(f"v_mov_b32 v2, s{S_STAMP + k}"); P(f"buffer_store_dword v2, v1, s[8:11], 0 offen offset:{4*k}"); P("s_nop 1")
    P("L_end:"); P("s_endpgm")
    for ins in rare: P(ins.text)
    P("L_text_end:")
    P('.section .rodata,"a"'); P(".p2align 6")
    kd(P, KN, 512, 256)
    return "\n".join(L) + "\n"

if __name__ == "__main__":
    cfg = Cfg(); cfg.verbose = True
    outp = sys.argv[1]
    for kv in sys.argv[2:]:
        k, v = kv.split("=", 1)
        setattr(cfg, k, eval(v))
    txt = gen(cfg)
    if cfg.cpf:
        import subprocess, re, tempfile, os
        tmp = re.sub(r"TOUCH\d+", "0", txt)
        open("_p1.s", "w").write(tmp)
        subprocess.check_call(["clang", "-x", "assembler", "-target", "amdgcn-amd-amdhsa", "-mcpu=gfx950", "-c", "_p1.s", "-o", "_p1.o"])
        sy = subprocess.check_output(["llvm-objdump", "-t", "_p1.o"]).decode()
        addr = {l.split()[-1]: int(l.split()[0], 16) for l in sy.splitlines() if " L_" in l}
        for n in cfg.touched:
            off = min(addr[f"L_t{n}"] - addr["L_pc"] + cfg.cpf_ahead, addr["L_text_end"] - addr["L_pc"] - 4096) & ~3
            txt = re.sub(rf"TOUCH{n}\b", str(off), txt)
    open(outp, "w").write(txt)
```
